```python
import torch

def _softmax(x, axis=-1):
    return torch.softmax(x, dim=axis)
def _gelu(x):
    return torch.nn.functional.gelu(x, approximate="tanh")
def _silu(x):
    return torch.nn.functional.silu(x)
def _sigmoid(x):
    return torch.sigmoid(x)
def _layernorm(x, axis=-1, eps=1e-5):
    m = x.mean(dim=axis, keepdim=True)
    v = x.var(dim=axis, keepdim=True, unbiased=False)
    return (x - m) / torch.sqrt(v + eps)
def _scatter_add(tgt, idx, src, axis=0):
    return tgt.clone().index_add_(axis, idx, src)
def _segment_sum(src, seg, n):
    out = torch.zeros((n,) + src.shape[1:], dtype=src.dtype)
    return out.index_add_(0, seg, src)
def _pad(x, pw):
    flat = tuple(v for pair in reversed(pw) for v in pair)
    return torch.nn.functional.pad(x, flat)

kernel_name = 'recurrent_scan__sliding_block_cached__geglu_ffn__decode'

def setup_inputs():

    _w = (lambda a: (lambda t: t.to(torch.bfloat16) if t.is_floating_point() else t)(torch.as_tensor(a)))
    def _A_setup():
        B, Sq, D = 2, 1, 576
        Hq, Hkv, Sk, Dh = 32, 16, 4096, 128
        assert Hq % Hkv == 0, (Hq, Hkv)
        return {
            "x": _w((lambda *s: torch.randn(*s, dtype=torch.bfloat16) * 0.05)(B, Sq, D)),
            "k_cache": _w((lambda *s: torch.randn(*s, dtype=torch.bfloat16) * 0.8)(B, Hkv, Sk, Dh)),
            "v_cache": _w((lambda *s: torch.randn(*s, dtype=torch.bfloat16) * 0.2)(B, Hkv, Sk, Dh)),
            "wq": _w((lambda *s: torch.randn(*s, dtype=torch.bfloat16) * 0.8)(D, Hq * Dh) * (D ** -0.5)),
            "wo": _w((lambda *s: torch.randn(*s, dtype=torch.bfloat16) * 0.2)(Hq * Dh, D) * ((Hq * Dh) ** -0.5)),
        }
    _A_in = _A_setup()

    def _B_setup():
        B, S, D, F = 2, 1, 576, 4608
        return {
            "x": _w((lambda *s: torch.randn(*s, dtype=torch.bfloat16) * 0.05)(B, S, D)),
            "w_gate": _w((lambda *s: torch.randn(*s, dtype=torch.bfloat16) * 0.1)(D, F)),
            "w_up": _w((lambda *s: torch.randn(*s, dtype=torch.bfloat16) * 0.1)(D, F)),
            "w_down": _w((lambda *s: torch.randn(*s, dtype=torch.bfloat16) * 0.1)(F, D)),
        }
    _B_in = _B_setup()

    return {
        "A_x": _A_in["x"],
        "A_k_cache": _A_in["k_cache"],
        "A_v_cache": _A_in["v_cache"],
        "A_wq": _A_in["wq"],
        "A_wo": _A_in["wo"],
        "B_x": _B_in["x"],
        "B_w_gate": _B_in["w_gate"],
        "B_w_up": _B_in["w_up"],
        "B_w_down": _B_in["w_down"],
    }

def reference(A_x, A_k_cache, A_v_cache, A_wq, A_wo, B_x, B_w_gate, B_w_up, B_w_down):
    def _A_ref(x, k_cache, v_cache, wq, wo):
        B, Sq, D = x.shape
        Hq, Dh = 32, 128
        Hkv, Sk = k_cache.shape[1], k_cache.shape[2]
        W = min(4096, max(256, Sk // 4))
        rep = Hq // Hkv
        q = (lambda x, *d: x.permute(*d))((x @ wq).reshape(B, Sq, Hq, Dh), 0, 2, 1, 3)
        k = (lambda x, n, axis: torch.repeat_interleave(x, n, dim=axis))(k_cache[:, :, Sk - W:, :], rep, axis=1)
        v = (lambda x, n, axis: torch.repeat_interleave(x, n, dim=axis))(v_cache[:, :, Sk - W:, :], rep, axis=1)
        scores = torch.einsum("bhqd,bhkd->bhqk", q, k) * (Dh ** -0.5)
        p = _softmax(scores, axis=-1)
        o = torch.einsum("bhqk,bhkd->bhqd", p, v)
        return (lambda x, *d: x.permute(*d))(o, 0, 2, 1, 3).reshape(B, Sq, Hq * Dh) @ wo

    def _B_ref(x, w_gate, w_up, w_down):
        return (_gelu(x @ w_gate) * (x @ w_up)) @ w_down

    x = A_x
    xn = _layernorm(x, axis=-1)
    s = _A_ref(xn, A_k_cache, A_v_cache, A_wq, A_wo)
    g = _silu(_B_ref(xn, B_w_gate, B_w_up, B_w_down))
    return x + s * g
```

```python
import re

TRANS = ("v_exp_f32", "v_log_f32", "v_rcp_f32", "v_rsq_f32", "v_sqrt_f32", "v_sin_f32", "v_cos_f32")

def regs(op):
    op = op.strip()
    op = op.lstrip("-")
    if op.startswith("abs(") or op.startswith("|"):
        op = op.strip("|")
        op = op[4:-1] if op.startswith("abs(") else op
    m = re.fullmatch(r"([vsa])\[(\d+):(\d+)\]", op)
    if m:
        return {f"{m.group(1)}{k}" for k in range(int(m.group(2)), int(m.group(3)) + 1)}
    if re.fullmatch(r"[vsa]\d+", op):
        return {op}
    if op in ("vcc", "vcc_lo", "vcc_hi"):
        return {"vcc"}
    if op in ("exec", "exec_lo", "exec_hi"):
        return {"exec"}
    return set()

class Ins:
    def __init__(self, text):
        self.text = text
        parts = text.split(None, 1)
        self.op = parts[0]
        rest = parts[1] if len(parts) > 1 else ""
        ops = [o.strip() for o in re.split(r",(?![^\[]*\])", rest)] if rest else []
        self.mods = ""
        if ops:
            last = ops[-1].split(None, 1)
            ops[-1] = last[0]
            self.mods = last[1] if len(last) > 1 else ""
        self.ops = ops
        op = self.op
        self.is_mfma = op.startswith("v_mfma")
        self.is_valu = op.startswith("v_") and not self.is_mfma
        self.is_vmem = op.startswith(("buffer_", "global_"))
        self.is_ds = op.startswith("ds_")
        self.is_dpp = "_dpp" in op
        self.is_trans = op.replace("_e32", "").replace("_e64", "") in TRANS
        self.is_dot = op.startswith("v_dot")
        self.is_perml = op.startswith("v_permlane")
        self.is_rdlane = op.startswith(("v_readlane", "v_readfirstlane"))
        self.w, self.r = set(), set()
        self.srcc = set()
        self.store_data = set()
        R = [regs(o) for o in ops]
        if self.is_mfma:
            self.w = R[0]; self.r = R[1] | R[2] | R[3]; self.srcc = R[3]; self.ab = R[1] | R[2]
        elif self.is_valu:
            if self.is_perml:
                self.w = R[0] | R[1]; self.r = R[0] | R[1]
            elif op.startswith(("v_add_co", "v_sub_co", "v_addc_co", "v_subb_co")):
                self.w = R[0] | R[1]; self.r = set().union(*R[2:])
            else:
                self.w = R[0]; self.r = set().union(*R[1:]) if len(R) > 1 else set()
                if op.startswith(("v_fmac", "v_dot2c", "v_pk_fmac")) or self.is_dpp:
                    self.r |= R[0]
        elif self.is_vmem:
            if "store" in op or "atomic" in op:
                didx = 0 if op.startswith("buffer_") else 1
                self.r = set().union(*R)
                if op.endswith(("x3", "x4")): self.store_data = R[didx]
            else:
                self.w = R[0]; self.r = set().union(*R[1:])
        elif self.is_ds:
            if "read" in op or "permute" in op or "swizzle" in op:
                self.w = R[0]; self.r = set().union(*R[1:])
            else:
                self.r = set().union(*R)
        else:
            if ops and op.startswith("s_") and not op.startswith(("s_cmp", "s_cbranch", "s_branch", "s_waitcnt", "s_nop", "s_sleep", "s_setprio", "s_barrier", "s_endpgm")):
                self.w = R[0]; self.r = set().union(*R[1:]) if len(R) > 1 else set()
            else:
                self.r = set().union(*R) if R else set()
        self.states = 1
        if op == "s_nop": self.states = int(ops[0]) + 1

def need_states(p, c):
    n = 0
    pv = {x for x in p.w if x[0] in "va" and x != "vcc"}
    ps = {x for x in p.w if x[0] == "s" or x == "vcc"}
    if p.is_valu:
        if c.is_mfma and pv & c.r: n = max(n, 3 if p.is_dot else 2)
        if c.is_valu and c.is_dpp and pv & c.r: n = max(n, 2)
        if c.is_perml and pv & c.r: n = max(n, 2)
        if c.is_rdlane and pv & c.r: n = max(n, 1)
        if p.is_trans and c.is_valu and not c.is_trans and pv & c.r: n = max(n, 1)
        if p.is_trans and (c.is_vmem or c.is_ds) and pv & c.r: n = max(n, 1)
        if ps and c.is_valu and ps & c.r: n = max(n, 2)
        if ps and c.is_vmem and ps & c.r: n = max(n, 5)
        if "sdwa" in p.op and c.is_valu and pv & (c.r | c.w): n = max(n, 1)
        if p.is_dot:
            same = c.op == p.op
            if not same and pv & (c.r | c.w): n = max(n, 3)
            if same and pv & (c.r - c.w): n = max(n, 3)
    if p.is_mfma:
        assert "16x16x32_bf16" in p.op
        if c.is_mfma:
            if p.w & c.ab: n = max(n, 8)
            if p.w & c.srcc and p.w != c.srcc: n = max(n, 6)
            if p.w & c.w and c.srcc != p.w: n = max(n, 8)
        elif (c.is_valu or c.is_vmem or c.is_ds) and p.w & (c.r | c.w): n = max(n, 8)
        if c.is_valu and p.srcc & c.w: n = max(n, 3)
    if p.store_data and (c.w & p.store_data): n = max(n, 2)
    return n

class Asm:
    def __init__(self):
        self.lines = []
        self.hist = []
        self.vm = []
        self.done = 0
        self.nlab = 0
        self.counting = True

    def raw(self, s): self.lines.append(s)
    def comment(self, s): self.lines.append("    ; " + s)

    def __call__(self, text, vid=None):
        ins = Ins(text)
        gap = 0; pad = 0
        for p in reversed(self.hist[-12:]):
            pad = max(pad, need_states(p, ins) - gap)
            gap += p.states
        if pad > 0:
            nop = Ins(f"s_nop {pad-1}")
            self.lines.append("    " + nop.text); self.hist.append(nop)
        self.lines.append("    " + text); self.hist.append(ins)
        if ins.is_vmem and self.counting:
            self.vm.append(vid or f"_anon{len(self.vm)}")
        return ins

    def settle(self):
        worst = 0; gap = 0
        for p in reversed(self.hist[-12:]):
            req = 8 if p.is_mfma else (5 if (p.is_valu and any(x[0] == 's' or x == 'vcc' for x in p.w)) else (3 if p.is_dot else (2 if (p.is_valu or p.store_data) else 0)))
            worst = max(worst, req - gap); gap += p.states
        if worst > 0: self(f"s_nop {worst-1}")

    def label(self, name):
        self.settle()
        self.lines.append(f"{name}:")

    def branch(self, text):
        self.settle_for_branch()
        self(text)

    def settle_for_branch(self):
        worst = 0; gap = 1
        for p in reversed(self.hist[-12:]):
            req = 8 if p.is_mfma else (5 if (p.is_valu and any(x[0] == 's' or x == 'vcc' for x in p.w)) else (3 if p.is_dot else (2 if (p.is_valu or p.store_data) else 0)))
            worst = max(worst, req - gap); gap += p.states
        if worst > 0: self(f"s_nop {worst-1}")

    def newlabel(self, base):
        self.nlab += 1
        return f"L_{base}_{self.nlab}"

    def vmwait_n(self, n):
        tgt = len(self.vm) - n
        if tgt > self.done:
            self(f"s_waitcnt vmcnt({n})"); self.done = tgt

    def wait(self, vid):
        idx = self.vm.index(vid)
        if idx >= self.done:
            self.vmwait_n(len(self.vm) - idx - 1)

    def arrived(self, vid): return self.vm.index(vid) < self.done
    def snapshot(self): return (list(self.vm), self.done)
    def restore(self, s): self.vm, self.done = list(s[0]), s[1]; self.hist = []
    def text(self): return "\n".join(self.lines) + "\n"
```

```python
import sys, math, struct
sys.path.insert(0, "gen")
from asmlib import Asm

NAME = "recurrent_scan__sliding_block_cached__geglu_ffn__decode_kernel"
HEADER = open("recurrent_scan__sliding_block_cached__geglu_ffn__decode.s.ref").read().split("; Override launch")[0]

def f32(x): return "0x%08x" % struct.unpack("<I", struct.pack("<f", x))[0]
LOG2E = 1.4426950408889634

WS_E = 0
WS_QP = 0x1000
OP_STRIDE = 1152
WS_OP = WS_QP + 256 * 1024
WS_HP = WS_OP + 256 * OP_STRIDE
WS_SP = WS_HP + 216 * 4096
WS_FP = WS_SP + 64 * 4608
WS_END = WS_FP + 72 * 4608
STAMP_OFF = 200 * 1024 * 1024
OOB = 0x40000000

LDS_Q = 0
LDS_QF = 4096
LDS_ML = 4608
LDS_O = 5120
LDS_R = 9216
LDS_SIZE = LDS_R + 6 * 4096

class P:
    W = 5
    W_FW = 6
    W_L = 5
    INIT_K = 5
    QG_AFTER = "V4"
    HG_WAIT = "D2"
    STAMPS = False
    SPIN = 1 << 16

def q4(b): return f"v[{b}:{b+3}]"

def gen(p):
    a = Asm()
    SX, SK, SV, SWQ, SWO, SDN, SWS, SOUT = 8, 12, 16, 20, 24, 28, 32, 36
    sGATE, sUP = 40, 42
    sWV, sKVH, sJ, sU, sX8 = 44, 45, 46, 47, 48
    sT, sT0 = 49, 50
    sQOFF, sKV0, sKV1 = 54, 55, 56
    sFB, sR3, sF = 57, 58, 59
    sTMP, sTMP2, sTMP3 = 60, 61, 62
    sSPIN = 63
    sSTEP = 64
    sDOFF, sWOFF = 66, 67
    sONES, sHI = 68, 69
    sG = 7
    sST = 72
    def srd(b): return f"s[{b}:{b+3}]"
    nst = [0]
    def stamp(k):
        if p.STAMPS: a(f"s_memrealtime s[{sST+2*k}:{sST+2*k+1}]")

    vL, vG, vI, vJ, vB = 1, 2, 3, 4, 5
    vFF, vL16 = 6, 7
    vM = 8
    vQ, vQ4, vK, vV, vW, vWh, vPF, vPH = 12, 13, 14, 15, 16, 17, 18, 19
    vGA = 20
    vMB, vRS = 22, 23
    vA0, vA1 = 24, 28
    vXQ = 32
    vPFD = 37
    vXO = 38
    vXG = 40
    vXR = 52
    accQ, accO, accG = 60, 64, 68
    T = 72
    RQ, RK, RV, RG = 104, 124, 156, 188
    ACC3 = 236
    NV = 248

    a.raw(HEADER.rstrip())
    a.raw(f"; @launch grid=(256,1,1) block=(256,1,1) lds={LDS_SIZE}")
    a.raw('.amdgcn_target "amdgcn-amd-amdhsa--gfx950"')
    a.raw(".text"); a.raw(f".globl {NAME}"); a.raw(".p2align 8"); a.raw(f".type {NAME},@function")
    a.raw(f"{NAME}:")
    stamp(0)
    a("s_cmp_ge_u32 s2, 256")
    a("s_cbranch_scc1 L_end")
    for b, off in ((SX, 0), (SWQ, 24), (SK, 8), (SV, 16), (SWS, 88), (SWO, 32), (SDN, 64), (SOUT, 72)):
        a(f"s_load_dwordx2 s[{b}:{b+1}], s[0:1], {off}")
    a(f"s_load_dwordx4 s[{sGATE}:{sGATE+3}], s[0:1], 48")
    a("s_getpc_b64 s[4:5]")
    a.raw("L_pc:")
    a("v_lshlrev_b32 v72, 7, v0")
    a("v_min_u32 v72, L_code_end-L_pc-4, v72")
    a(f"global_load_dword v{vPFD}, v72, s[4:5]", vid="P")
    a(f"v_and_b32 v{vL}, 63, v0")
    a("v_lshrrev_b32 v73, 6, v0")
    a(f"v_lshrrev_b32 v{vG}, 4, v{vL}")
    a(f"v_readfirstlane_b32 s{sWV}, v73")
    a(f"v_and_b32 v{vI}, 15, v0")
    a(f"v_and_b32 v{vJ}, 7, v0")
    a(f"v_bfe_u32 v{vB}, v0, 3, 1")
    for b, n in ((SX, 2304), (SWQ, 576 * 8192), (SK, 1 << 25), (SV, 1 << 25), (SWS, 1 << 28 if p.STAMPS else WS_END),
                 (SWO, 4096 * 1152), (SDN, 4608 * 1152), (SOUT, 2304)):
        a(f"s_mov_b32 s{b+2}, {n}")
        a(f"s_mov_b32 s{b+3}, 0x20000")
    a(f"s_and_b32 s{sX8}, s2, 7")
    a(f"s_lshr_b32 s{sU}, s2, 3")
    a(f"s_lshr_b32 s{sTMP}, s{sU}, 4")
    a(f"s_lshl_b32 s{sKVH}, s{sX8}, 1")
    a(f"s_add_u32 s{sKVH}, s{sKVH}, s{sTMP}")
    a(f"s_and_b32 s{sJ}, s{sU}, 15")
    a(f"s_lshr_b32 s{sTMP}, s{sJ}, 1")
    a(f"s_mul_i32 s{sTMP3}, s{sTMP}, 72")
    a(f"s_mul_i32 s{sTMP2}, s{sWV}, 18")
    a(f"s_add_u32 s{sTMP3}, s{sTMP3}, s{sTMP2}")
    a(f"s_lshl_b32 s{sQOFF}, s{sTMP3}, 13")
    a(f"s_and_b32 s{sTMP2}, s{sJ}, 1")
    a(f"s_lshl_b32 s{sKV0}, s{sKVH}, 1")
    a(f"s_add_u32 s{sKV0}, s{sKV0}, s{sTMP2}")
    a(f"s_lshl_b32 s{sKV0}, s{sKV0}, 8")
    a(f"s_add_u32 s{sQOFF}, s{sQOFF}, s{sKV0}")
    a(f"s_lshl_b32 s{sKV0}, s{sTMP2}, 4")
    a(f"s_add_u32 s{sKV0}, s{sKV0}, s{sKVH}")
    a(f"s_lshl_b32 s{sKV0}, s{sKV0}, 20")
    a(f"s_lshl_b32 s{sTMP}, s{sTMP}, 15")
    a(f"s_add_u32 s{sKV0}, s{sKV0}, s{sTMP}")
    a(f"s_lshl_b32 s{sTMP}, s{sWV}, 13")
    a(f"s_add_u32 s{sKV0}, s{sKV0}, s{sTMP}")
    a(f"s_add_u32 s{sKV0}, s{sKV0}, {3072*256}")
    a(f"s_add_u32 s{sKV1}, s{sKV0}, 4096")
    a(f"s_lshl_b32 s{sTMP3}, s{sTMP3}, 1")
    a(f"s_mul_i32 s{sFB}, s{sU}, 43")
    a(f"s_lshr_b32 s{sFB}, s{sFB}, 7")
    a(f"s_mul_i32 s{sTMP}, s{sFB}, 3")
    a(f"s_sub_u32 s{sR3}, s{sU}, s{sTMP}")
    a(f"s_mul_i32 s{sF}, s{sX8}, 9")
    a(f"s_add_u32 s{sF}, s{sF}, s{sFB}")
    a(f"v_mul_u32_u24 v74, 1152, v{vB}")
    a(f"v_lshl_add_u32 v75, v{vG}, 3, v{vJ}")
    a(f"v_lshl_add_u32 v76, v75, 4, v74")
    a(f"v_lshl_add_u32 v77, v75, 2, v74")
    a(f"v_lshl_add_u32 v78, v{vG}, 3, v74")
    a(f"v_and_b32 v80, 1, v{vG}")
    a(f"v_lshl_add_u32 v79, v80, 1, v74")
    a(f"v_lshlrev_b32 v81, 4, v{vI}")
    a(f"v_lshl_add_u32 v{vQ}, v{vG}, 15, v81")
    a(f"v_lshl_add_u32 v{vQ4}, v80, 13, v81")
    a(f"v_lshl_add_u32 v{vV}, v{vG}, 9, v81")
    a(f"v_bfe_u32 v82, v0, 2, 2")
    a(f"v_lshlrev_b32 v{vK}, 9, v82")
    a(f"v_and_b32 v82, 1, v0")
    a(f"v_lshl_add_u32 v{vK}, v82, 8, v{vK}")
    a(f"v_bfe_u32 v82, v0, 1, 1")
    a(f"v_lshl_add_u32 v{vK}, v82, 6, v{vK}")
    a(f"v_lshl_add_u32 v{vK}, v{vG}, 4, v{vK}")
    a(f"v_mul_u32_u24 v83, 24, v{vG}")
    a(f"v_add_u32 v83, v83, v74")
    a("s_waitcnt lgkmcnt(0)")
    stamp(1)
    XS = 84
    XA, XB = 94, 93
    a(f"buffer_load_dwordx4 {q4(XS)}, v76, {srd(SX)}, 0 offen", vid="X0")
    a(f"buffer_load_dwordx4 {q4(XS+4)}, v76, {srd(SX)}, 0 offen offset:512", vid="X1")
    a(f"buffer_load_dword v{XS+8}, v77, {srd(SX)}, 0 offen offset:1024", vid="X2")
    a(f"buffer_load_dwordx2 v[{XA}:{XA+1}], v78, {srd(SX)}, s{sTMP3} offen", vid="XA")
    a(f"buffer_load_ushort v{XB}, v79, {srd(SX)}, s{sTMP3} offen offset:32", vid="XB")
    for t in range(4):
        a(f"buffer_load_dwordx4 {q4(RQ+4*t)}, v{vQ}, {srd(SWQ)}, s{sQOFF} offen nt", vid=f"Q{t}")
        a(f"s_add_u32 s{sQOFF}, s{sQOFF}, {8192 if t < 3 else 13*8192}")
    a(f"buffer_load_dwordx4 {q4(RQ+16)}, v{vQ4}, {srd(SWQ)}, s{sQOFF} offen nt", vid="Q4")
    a(f"s_load_dword s{sT}, s[{SWS}:{SWS+1}], {WS_E}")

    stream = []
    def kload(n):
        o, s = n >> 1, n & 1
        return lambda: a(f"buffer_load_dwordx4 {q4(RK+4*n)}, v{vK}, {srd(SK)}, s{sKV0 if o < 2 else sKV1} offen offset:{(o&1)*2048 + s*128} nt", vid=f"K{n}")
    def vload(n):
        o, kb = n >> 1, n & 1
        return lambda: a(f"buffer_load_dwordx4 {q4(RV+4*n)}, v{vV}, {srd(SV)}, s{sKV0 if o < 2 else sKV1} offen offset:{(o&1)*2048 + kb*256} nt", vid=f"V{n}")
    for n in range(8): stream.append((f"K{n}", kload(n)))
    for n in range(8): stream.append((f"V{n}", vload(n)))
    win = [p.W]
    hooks = {}
    def issue():
        vid, fn = stream.pop(0); fn()
        if vid in hooks: hooks.pop(vid)()
    def pump(n=1):
        for _ in range(n):
            if not stream: return
            a.vmwait_n(win[0] - 1); issue()
    def need(vid):
        while not (vid in a.vm and a.arrived(vid)):
            if stream: pump()
            else: a.wait(vid)

    for _ in range(p.INIT_K): issue()
    a(f"s_mul_i32 s{sTMP}, s{sR3}, 192")
    a(f"s_mul_i32 s{sTMP2}, s{sWV}, 48")
    a(f"s_add_u32 s{sTMP}, s{sTMP}, s{sTMP2}")
    a(f"s_lshl_b32 s{sTMP2}, s{sTMP}, 1")
    a(f"buffer_load_dwordx4 {q4(vXR)}, v83, {srd(SX)}, s{sTMP2} offen", vid="XC")
    a(f"buffer_load_dwordx2 v[{vXR+4}:{vXR+5}], v83, {srd(SX)}, s{sTMP2} offen offset:16", vid="XD")
    a(f"s_mul_i32 s{sTMP}, s{sTMP}, 9216")
    a(f"s_lshl_b32 s{sTMP2}, s{sF}, 7")
    a(f"s_add_u32 s{sTMP}, s{sTMP}, s{sTMP2}")
    a(f"v_mul_u32_u24 v72, {12*9216}, v{vG}")
    a(f"v_lshl_add_u32 v72, v{vJ}, 4, v72")
    a(f"v_add_u32 v72, s{sTMP}, v72")
    a(f"v_cmp_eq_u32 vcc, 1, v{vB}")
    a(f"v_mov_b32 v73, s{sGATE}")
    a(f"v_mov_b32 v75, s{sUP}")
    a(f"v_cndmask_b32 v{vGA}, v73, v75, vcc")
    a(f"v_mov_b32 v73, s{sGATE+1}")
    a(f"v_mov_b32 v75, s{sUP+1}")
    a(f"v_cndmask_b32 v{vGA+1}, v73, v75, vcc")
    a(f"v_add_co_u32 v{vGA}, vcc, v{vGA}, v72")
    a(f"v_addc_co_u32 v{vGA+1}, vcc, 0, v{vGA+1}, vcc")
    a(f"s_mov_b32 s{sSTEP}, 9216")
    a(f"s_mov_b32 s{sSTEP+1}, 0")
    a(f"s_mov_b32 s{sONES}, 0x3f803f80")
    a(f"s_mov_b32 s{sHI}, 0xffff0000")
    a(f"v_mov_b32 v{vFF}, 0xff")
    a(f"v_lshlrev_b32 v{vL16}, 4, v{vL}")
    a(f"v_and_b32 v72, 1, v0")
    a(f"v_lshlrev_b32 v72, 4, v72")
    a(f"v_mov_b32 v73, 0xffff")
    a(f"v_lshlrev_b32 v72, v72, v73")
    a(f"v_lshrrev_b32 v73, 1, v{vJ}")
    for r in range(4):
        a(f"v_cmp_eq_u32 vcc, {r}, v73")
        a(f"v_cndmask_b32 v{vM+r}, 0, v72, vcc")
    a(f"v_mul_u32_u24 v72, {4*1152}, v{vG}")
    a(f"v_add_u32 v{vW}, v72, v81")
    a(f"v_add_u32 v72, v72, v74")
    a(f"v_lshl_add_u32 v{vWh}, v{vJ}, 4, v72")
    a(f"v_add_u32 v{vWh}, 256, v{vWh}")
    a(f"v_lshrrev_b32 v75, 1, v{vG}")
    a(f"v_mul_u32_u24 v72, 2304, v75")
    a(f"v_lshl_add_u32 v72, v80, 4, v72")
    a(f"v_lshl_add_u32 v{vPF}, v{vI}, 5, v72")
    a(f"v_lshl_add_u32 v{vPH}, v{vJ}, 5, v72")
    a(f"v_lshl_add_u32 v{vPH}, v{vB}, 30, v{vPH}")
    a(f"v_add_u32 v{vPH}, 512, v{vPH}")

    def bf16r(dst, src, tmp=None):
        tmp = dst if tmp is None else tmp
        a(f"v_cvt_pk_bf16_f32 v{tmp}, v{src}, v{src}")
        a(f"v_and_b32 v{dst}, s{sHI}, v{tmp}")
    def dpp(op, d, s0, s1, ctl):
        a(f"{op}_dpp v{d}, v{s0}, v{s1} {ctl} row_mask:0xf bank_mask:0xf")
    def red8(op, rs):
        for ctl in ("quad_perm:[1,0,3,2]", "quad_perm:[2,3,0,1]", "row_half_mirror"):
            for r in rs: dpp(op, r, r, r, ctl)
    def redg(op, rs, tmps):
        for sw in ("v_permlane16_swap_b32", "v_permlane32_swap_b32"):
            for r, t in zip(rs, tmps): a(f"v_mov_b32 v{t}, v{r}")
            for r, t in zip(rs, tmps): a(f"{sw} v{r}, v{t}")
            for r, t in zip(rs, tmps): a(f"{op} v{r}, v{r}, v{t}")

    a.wait("X2")
    stamp(2)
    sm, sq = 72, 73
    a(f"v_mov_b32 v{sm}, 0"); a(f"v_mov_b32 v{sq}, 0")
    for k in range(9):
        a(f"v_dot2c_f32_bf16 v{sm}, s{sONES}, v{XS+k}")
        a(f"v_dot2c_f32_bf16 v{sq}, v{XS+k}, v{XS+k}")
    red8("v_add_f32", [sm, sq])
    redg("v_add_f32", [sm, sq], [76, 77])
    a(f"v_mul_f32 v{sm}, {f32(1/576)}, v{sm}")
    a(f"v_mul_f32 v{sq}, {f32(1/576)}, v{sq}")
    a(f"v_fma_f32 v{sq}, -v{sm}, v{sm}, v{sq}")
    a(f"v_max_f32 v{sq}, 0, v{sq}")
    bf16r(vMB, sm); bf16r(sq, sq)
    a(f"v_add_f32 v{sq}, {f32(1e-5)}, v{sq}")
    bf16r(sq, sq)
    a(f"v_sqrt_f32 v{sq}, v{sq}")
    bf16r(sq, sq)
    a(f"v_rcp_f32 v{vRS}, v{sq}")

    def normalise(raws, dst, tmp):
        n = len(raws)
        for k, (r, h) in enumerate(raws):
            if h: a(f"v_and_b32 v{tmp+k}, s{sHI}, v{r}")
            else: a(f"v_lshlrev_b32 v{tmp+k}, 16, v{r}")
        for k in range(n): a(f"v_sub_f32 v{tmp+k}, v{tmp+k}, v{vMB}")
        for k in range(n): a(f"v_cvt_pk_bf16_f32 v{tmp+k}, v{tmp+k}, v{tmp+k}")
        for k in range(n): a(f"v_and_b32 v{tmp+k}, s{sHI}, v{tmp+k}")
        for k in range(n): a(f"v_mul_f32 v{tmp+k}, v{tmp+k}, v{vRS}")
        for k in range(n): a(f"v_cvt_pk_bf16_f32 v{dst+k}, v{tmp+k}, v{tmp+k}")
    a.wait("XB")
    normalise([(XA, 0), (XA, 1), (XA+1, 0), (XA+1, 1), (XB, 0)], vXQ, 76)
    a(f"v_cmp_gt_u32 vcc, 2, v{vG}")
    a(f"v_cndmask_b32 v{vXQ+4}, 0, v{vXQ+4}, vcc")

    flip = [0]
    def aop(rep, ctl=None):
        q = (vA0, vA1)[flip[0]]; flip[0] ^= 1
        for r in range(4):
            if ctl: dpp("v_and_b32", q + r, rep, vM + r, ctl)
            else: a(f"v_and_b32 v{q+r}, v{rep}, v{vM+r}")
        return q
    def mfma(d, A, B, first=False):
        a(f"v_mfma_f32_16x16x32_bf16 {q4(d)}, {q4(A)}, {q4(B)}, {'0' if first else q4(d)}")

    a("s_waitcnt lgkmcnt(0)")
    for k in range(4):
        a(f"s_lshr_b32 s{sT0+k}, s{sT}, {8*k}")
        a(f"s_add_u32 s{sT0+k}, s{sT0+k}, 1")
        a(f"s_and_b32 s{sT0+k}, s{sT0+k}, 0xff")
    def tag(b):
        for k in range(4): a(f"v_bfi_b32 v{b+k}, v{vFF}, s{sT0+k}, v{b+k}")
    def untag(quads, acc):
        allr = []
        for b in quads:
            for k in range(4):
                a(f"v_xor_b32 v{b+k}, s{sT0+k}, v{b+k}"); allr.append(b + k)
        a(f"v_or3_b32 v{acc}, v{allr[0]}, v{allr[1]}, v{allr[2]}")
        rest = allr[3:]
        while len(rest) >= 2:
            a(f"v_or3_b32 v{acc}, v{acc}, v{rest[0]}, v{rest[1]}"); rest = rest[2:]
        if rest: a(f"v_or_b32 v{acc}, v{acc}, v{rest[0]}")
        a(f"v_and_b32 v{acc}, v{vFF}, v{acc}")
        a(f"v_cmp_ne_u32 vcc, 0, v{acc}")
    def checked(loads, quads, acc, name):
        top, ok = a.newlabel(name + "_chk"), a.newlabel(name + "_ok")
        a(f"s_mov_b32 s{sSPIN}, {p.SPIN}")
        a.label(top)
        untag(quads, acc)
        a("s_cmp_eq_u64 vcc, 0")
        a.branch(f"s_cbranch_scc1 {ok}")
        a.counting = False
        loads()
        a.counting = True
        a(f"s_sub_u32 s{sSPIN}, s{sSPIN}, 1")
        a(f"s_cmp_eq_u32 s{sSPIN}, 0")
        a("s_cbranch_scc1 L_end")
        a("s_waitcnt vmcnt(0)")
        a.branch(f"s_branch {top}")
        a.label(ok)

    for t in range(5):
        q = aop(vXQ + t)
        a.wait(f"Q{t}")
        mfma(accQ, q, RQ + 4 * t, first=(t == 0))
    stamp(3)
    a(f"s_lshl_b32 s{sTMP}, s{sWV}, 10")
    a(f"v_add_u32 v72, s{sTMP}, v{vL16}")
    a(f"v_mov_b32 v{vXO}, v72")
    a(f"ds_write_b128 v72, {q4(accQ)} offset:{LDS_Q}")
    pump()
    a("s_waitcnt lgkmcnt(0)")
    a("s_barrier")
    skip = a.newlabel("qpub")
    a(f"s_cmp_lg_u32 s{sWV}, 0")
    a.branch(f"s_cbranch_scc1 {skip}")
    for k in range(4): a(f"ds_read_b128 {q4(T+4*k)}, v{vL16} offset:{LDS_Q + 1024*k}")
    a(f"s_and_b32 s{sTMP}, s{sJ}, 1")
    a(f"s_lshl_b32 s{sTMP2}, s{sKVH}, 1")
    a(f"s_add_u32 s{sTMP}, s{sTMP}, s{sTMP2}")
    a(f"s_lshl_b32 s{sTMP}, s{sTMP}, 3")
    a(f"s_lshr_b32 s{sTMP2}, s{sJ}, 1")
    a(f"s_add_u32 s{sTMP}, s{sTMP}, s{sTMP2}")
    a(f"s_lshl_b32 s{sTMP}, s{sTMP}, 10")
    a(f"s_add_u32 s{sTMP}, s{sTMP}, {WS_QP}")
    def d_off512(dst, tmp):
        a(f"v_lshrrev_b32 v{tmp}, 1, v{vG}")
        a(f"v_lshlrev_b32 v{dst}, 9, v{tmp}")
        a(f"v_lshl_add_u32 v{dst}, v{vI}, 5, v{dst}")
        a(f"v_and_b32 v{tmp}, 1, v{vG}")
        a(f"v_lshl_add_u32 v{dst}, v{tmp}, 4, v{dst}")
    d_off512(T + 16, T + 17)
    a("s_waitcnt lgkmcnt(0)")
    def sum4(b):
        a(f"v_pk_add_f32 v[{b}:{b+1}], v[{b}:{b+1}], v[{b+4}:{b+5}]")
        a(f"v_pk_add_f32 v[{b+2}:{b+3}], v[{b+2}:{b+3}], v[{b+6}:{b+7}]")
        a(f"v_pk_add_f32 v[{b+8}:{b+9}], v[{b+8}:{b+9}], v[{b+12}:{b+13}]")
        a(f"v_pk_add_f32 v[{b+10}:{b+11}], v[{b+10}:{b+11}], v[{b+14}:{b+15}]")
        a(f"v_pk_add_f32 v[{b}:{b+1}], v[{b}:{b+1}], v[{b+8}:{b+9}]")
        a(f"v_pk_add_f32 v[{b+2}:{b+3}], v[{b+2}:{b+3}], v[{b+10}:{b+11}]")
    sum4(T); tag(T)
    a.counting = False
    a(f"buffer_store_dwordx4 {q4(T)}, v{T+16}, {srd(SWS)}, s{sTMP} offen sc1")
    a.counting = True
    a.label(skip)
    pump()
    a.wait("XD")
    normalise([(vXR + k // 2, k & 1) for k in range(6)], vXG, T)
    pump()
    normalise([(vXR + 3 + k // 2, k & 1) for k in range(6)], vXG + 6, T)
    pump()
    QG = 96
    vQGo = 95
    sQG = sQOFF
    a(f"s_lshl_b32 s{sQG}, s{sKVH}, 1")
    a(f"s_lshr_b32 s{sTMP}, s{sWV}, 1")
    a(f"s_add_u32 s{sQG}, s{sQG}, s{sTMP}")
    a(f"s_lshl_b32 s{sQG}, s{sQG}, 13")
    a(f"s_and_b32 s{sTMP}, s{sJ}, 1")
    a(f"s_lshl_b32 s{sTMP}, s{sTMP}, 9")
    a(f"s_add_u32 s{sQG}, s{sQG}, s{sTMP}")
    a(f"s_and_b32 s{sTMP}, s{sWV}, 1")
    a(f"s_lshl_b32 s{sTMP}, s{sTMP}, 8")
    a(f"s_add_u32 s{sQG}, s{sQG}, s{sTMP}")
    a(f"s_add_u32 s{sQG}, s{sQG}, {WS_QP}")
    a(f"s_add_u32 s{sTMP3}, s{sQG}, 4096")
    a(f"v_lshlrev_b32 v{vQGo}, 4, v{vI}")
    a(f"v_lshl_add_u32 v{vQGo}, v{vG}, 10, v{vQGo}")
    def qgather():
        a(f"buffer_load_dwordx4 {q4(QG)}, v{vQGo}, {srd(SWS)}, s{sQG} offen sc1", vid="QG0")
        a(f"buffer_load_dwordx4 {q4(QG+4)}, v{vQGo}, {srd(SWS)}, s{sTMP3} offen sc1", vid="QG1")
    hooks[p.QG_AFTER] = qgather
    a(f"s_lshl_b32 s{sDOFF}, s{sF}, 6")
    a(f"s_lshl_b32 s{sTMP}, s{sWV}, 4")
    a(f"s_add_u32 s{sDOFF}, s{sDOFF}, s{sTMP}")
    a(f"s_mul_i32 s{sDOFF}, s{sDOFF}, 1152")
    a(f"s_mul_i32 s{sTMP2}, s{sR3}, 384")
    a(f"s_add_u32 s{sDOFF}, s{sDOFF}, s{sTMP2}")
    while stream: pump()
    assert not hooks
    a(f"s_cmp_ge_u32 s{sU}, 27")
    a.branch("s_cbranch_scc1 L_path_L")
    a(f"s_cmp_lt_u32 s{sU}, 9")
    a.branch("s_cbranch_scc1 L_path_FW")
    snap = a.snapshot()

    def gload(n):
        def f():
            a(f"global_load_dwordx4 {q4(RG+4*n)}, v[{vGA}:{vGA+1}], off nt", vid=f"G{n}")
            if n < 11: a(f"v_lshl_add_u64 v[{vGA}:{vGA+1}], s[{sSTEP}:{sSTEP+1}], 0, v[{vGA}:{vGA+1}]")
        return f
    def w3load(name, n, reg, sr, soff, extra=0):
        if n < 4: return lambda: a(f"buffer_load_dwordx4 {q4(reg)}, v{vW}, {srd(sr)}, s{soff} offen offset:{n*1152} nt", vid=name)
        return lambda: a(f"buffer_load_dwordx4 {q4(reg)}, v{vWh}, {srd(sr)}, s{soff} offen offset:{(n-4)*2304} nt", vid=name)

    def attention():
        need("QG1")
        stamp(4)
        checked(qgather, [QG, QG + 4], T, "q")
        for k in range(4): a(f"v_add_f32 v{QG+k}, v{QG+k}, v{QG+4+k}")
        a(f"v_permlane32_swap_b32 v{QG}, v{QG+1}")
        a(f"v_permlane32_swap_b32 v{QG+2}, v{QG+3}")
        a(f"v_add_f32 v{QG}, v{QG}, v{QG+1}")
        a(f"v_add_f32 v{QG+2}, v{QG+2}, v{QG+3}")
        a(f"v_lshrrev_b32 v{T}, 1, v{vG}")
        a(f"v_and_b32 v{T+1}, 1, v{vG}")
        a(f"v_permlane16_swap_b32 v{QG}, v{QG+2}")
        a(f"v_lshl_add_u32 v{T}, v{T+1}, 1, v{T}")
        a(f"v_lshlrev_b32 v{T}, 1, v{T}")
        a(f"v_add_f32 v{QG}, v{QG}, v{QG+2}")
        a(f"v_lshl_add_u32 v{T}, v{vI}, 3, v{T}")
        a(f"s_lshl_b32 s{sTMP}, s{sWV}, 7")
        a(f"v_cvt_pk_bf16_f32 v{QG}, v{QG}, v{QG}")
        a(f"v_add_u32 v{T}, s{sTMP}, v{T}")
        a(f"ds_write_b16 v{T}, v{QG} offset:{LDS_QF}")
        a(f"v_and_b32 v{T+1}, 1, v{vL}")
        a(f"v_lshl_add_u32 v{T+1}, v{T+1}, 2, v{vG}")
        a(f"v_lshlrev_b32 v{T+1}, 4, v{T+1}")
        a(f"v_lshl_add_u32 v{T+1}, v{vB}, 8, v{T+1}")
        a("s_waitcnt lgkmcnt(0)")
        a("s_barrier")
        a(f"ds_read_b128 {q4(QG)}, v{T+1} offset:{LDS_QF}")
        a(f"ds_read_b128 {q4(QG+4)}, v{T+1} offset:{LDS_QF+128}")
        need("K7")
        a("s_waitcnt lgkmcnt(0)")
        S = RQ
        for o in range(4): mfma(S + 4 * o, RK + 8 * o, QG, first=True)
        for o in range(4): mfma(S + 4 * o, RK + 8 * o + 4, QG + 4)
        pump()
        sc = T
        for o in range(4):
            for kb in range(2):
                a(f"v_mov_b32_dpp v{sc+2*o+kb}, v{S+4*o+kb} quad_perm:[0,0,2,2] row_mask:0xf bank_mask:0xf")
        for o in range(4):
            for kb in range(2):
                dpp("v_add_f32", sc + 2 * o + kb, S + 4 * o + 2 + kb, sc + 2 * o + kb, "quad_perm:[1,1,3,3]")
        pk = T + 8
        def round8():
            for o in range(4): a(f"v_cvt_pk_bf16_f32 v{pk+o}, v{sc+2*o}, v{sc+2*o+1}")
            for o in range(4):
                a(f"v_lshlrev_b32 v{sc+2*o}, 16, v{pk+o}")
                a(f"v_and_b32 v{sc+2*o+1}, s{sHI}, v{pk+o}")
        round8()
        for k in range(8): a(f"v_mul_f32 v{sc+k}, {f32(128 ** -0.5)}, v{sc+k}")
        round8()
        pump()
        m, l = T + 12, T + 13
        a(f"v_max3_f32 v{m}, v{sc}, v{sc+1}, v{sc+2}")
        a(f"v_max3_f32 v{l}, v{sc+3}, v{sc+4}, v{sc+5}")
        a(f"v_max3_f32 v{m}, v{m}, v{sc+6}, v{sc+7}")
        a(f"v_max_f32 v{m}, v{m}, v{l}")
        redg("v_max_f32", [m], [T + 14])
        for k in range(8): a(f"v_sub_f32 v{sc+k}, v{sc+k}, v{m}")
        for k in range(8): a(f"v_mul_f32 v{sc+k}, {f32(LOG2E)}, v{sc+k}")
        for k in range(8): a(f"v_exp_f32 v{sc+k}, v{sc+k}")
        a(f"v_add_f32 v{l}, v{sc}, v{sc+1}")
        for k in range(2, 8): a(f"v_add_f32 v{l}, v{l}, v{sc+k}")
        for k in range(8): a(f"v_cvt_pk_bf16_f32 v{sc+k}, v{sc+k}, v{sc+k}")
        redg("v_add_f32", [l], [T + 14])
        pump()
        need("V7")
        for n in range(8):
            q = aop(sc + n)
            mfma(accO, q, RV + 4 * n, first=(n == 0))
        a(f"s_lshl_b32 s{sTMP}, s{sWV}, 3")
        a(f"v_lshlrev_b32 v{T+14}, 5, v{vB}")
        a(f"v_add_u32 v{T+14}, s{sTMP}, v{T+14}")
        a(f"ds_write_b64 v{T+14}, v[{m}:{l}] offset:{LDS_ML}")
        a(f"ds_write_b128 v{vXO}, {q4(accO)} offset:{LDS_O}")
        stamp(5)
        pump()
        a("s_waitcnt lgkmcnt(0)")
        a("s_barrier")
        skip = a.newlabel("opub")
        a(f"s_cmp_lg_u32 s{sWV}, 1")
        a.branch(f"s_cbranch_scc1 {skip}")
        ml = T + 16
        a(f"v_lshrrev_b32 v{ml+8}, 1, v{vG}")
        a(f"v_lshlrev_b32 v{ml+9}, 5, v{ml+8}")
        a(f"ds_read_b128 {q4(ml)}, v{ml+9} offset:{LDS_ML}")
        a(f"ds_read_b128 {q4(ml+4)}, v{ml+9} offset:{LDS_ML+16}")
        for k in range(4): a(f"ds_read_b128 {q4(T+4*k)}, v{vL16} offset:{LDS_O + 1024*k}")
        a(f"s_and_b32 s{sTMP}, s{sJ}, 1")
        a(f"s_lshl_b32 s{sTMP2}, s{sKVH}, 1")
        a(f"s_add_u32 s{sTMP}, s{sTMP}, s{sTMP2}")
        a(f"s_lshl_b32 s{sTMP}, s{sTMP}, 3")
        a(f"s_lshr_b32 s{sTMP2}, s{sJ}, 1")
        a(f"s_add_u32 s{sTMP}, s{sTMP}, s{sTMP2}")
        a(f"s_mul_i32 s{sTMP}, s{sTMP}, {OP_STRIDE}")
        a(f"s_add_u32 s{sTMP}, s{sTMP}, {WS_OP}")
        off, off2, MM = ml + 10, ml + 11, 100
        d_off512(off, off2)
        a(f"v_and_b32 v{off2}, 31, v{vL}")
        a(f"v_cmp_ne_u32 vcc, 0, v{off2}")
        a(f"v_lshlrev_b32 v{off2}, 4, v{ml+8}")
        a(f"v_mov_b32 v{ml+9}, {OOB}")
        a(f"v_cndmask_b32 v{off2}, v{off2}, v{ml+9}, vcc")
        a("s_waitcnt lgkmcnt(4)")
        a(f"v_max3_f32 v{MM}, v{ml}, v{ml+2}, v{ml+4}")
        a(f"v_max_f32 v{MM}, v{MM}, v{ml+6}")
        for k in range(4): a(f"v_sub_f32 v{ml+2*k}, v{ml+2*k}, v{MM}")
        for k in range(4): a(f"v_mul_f32 v{ml+2*k}, {f32(LOG2E)}, v{ml+2*k}")
        for k in range(4): a(f"v_exp_f32 v{ml+2*k}, v{ml+2*k}")
        a(f"v_mul_f32 v{MM+1}, v{ml}, v{ml+1}")
        for k in range(1, 4): a(f"v_fmac_f32 v{MM+1}, v{ml+2*k}, v{ml+2*k+1}")
        a(f"v_mov_b32 v{MM+2}, v{MM}")
        a(f"v_mov_b32 v{MM+3}, v{MM+1}")
        a("s_waitcnt lgkmcnt(0)")
        for r in range(4): a(f"v_mul_f32 v{T+r}, v{ml}, v{T+r}")
        for k in range(1, 4):
            for r in range(4): a(f"v_fmac_f32 v{T+r}, v{ml+2*k}, v{T+4*k+r}")
        tag(T); tag(MM)
        a.counting = False
        a(f"buffer_store_dwordx4 {q4(T)}, v{off}, {srd(SWS)}, s{sTMP} offen sc1")
        a(f"buffer_store_dwordx4 {q4(MM)}, v{off2}, {srd(SWS)}, s{sTMP} offen offset:1024 sc1")
        a.counting = True
        a.label(skip)

    OG = 96
    vOGo, vOGm = 94, 95
    sOG, sOGm = sKV0, sKV1
    def ogather_setup():
        a(f"s_lshr_b32 s{sTMP}, s{sG}, 2")
        a(f"s_mul_i32 s{sOG}, s{sTMP}, {16*OP_STRIDE}")
        a(f"s_add_u32 s{sOG}, s{sOG}, {WS_OP}")
        a(f"s_bfe_u32 s{sTMP}, s{sG}, 0x10001")
        a(f"s_lshl_b32 s{sTMP}, s{sTMP}, 4")
        a(f"s_add_u32 s{sOGm}, s{sOG}, s{sTMP}")
        a(f"s_and_b32 s{sTMP}, s{sG}, 3")
        a(f"s_lshl_b32 s{sTMP}, s{sTMP}, 8")
        a(f"s_add_u32 s{sOG}, s{sOG}, s{sTMP}")
        a(f"s_lshl_b32 s{sTMP}, s{sWV}, 6")
        a(f"s_add_u32 s{sOG}, s{sOG}, s{sTMP}")
        a(f"v_mul_u32_u24 v{vOGm}, {OP_STRIDE}, v{vI}")
        a(f"v_lshl_add_u32 v{vOGo}, v{vG}, 4, v{vOGm}")
    def ogather():
        a(f"buffer_load_dwordx4 {q4(OG)}, v{vOGo}, {srd(SWS)}, s{sOG} offen sc1", vid="OG0")
        a(f"buffer_load_dwordx4 {q4(OG+4)}, v{vOGm}, {srd(SWS)}, s{sOGm} offen offset:1024 sc1", vid="OG1")
    def ofinish():
        checked(ogather, [OG, OG + 4], T + 13, "o")
        m, l, M = OG + 4, OG + 5, OG + 6
        red8("v_max_f32", [M])
        a(f"v_sub_f32 v{m}, v{m}, v{M}")
        a(f"v_mul_f32 v{m}, {f32(LOG2E)}, v{m}")
        a(f"v_exp_f32 v{m}, v{m}")
        for r in (l, OG, OG + 1, OG + 2, OG + 3): a(f"v_mul_f32 v{r}, v{r}, v{m}")
        red8("v_add_f32", [l, OG, OG + 1, OG + 2, OG + 3])
        a(f"v_rcp_f32 v{l}, v{l}")
        for r in range(4): a(f"v_mul_f32 v{OG+r}, v{OG+r}, v{l}")
        for r in range(4): a(f"v_cvt_pk_bf16_f32 v{OG+r}, v{OG+r}, v{OG+r}")
    def wsoff(c3_s):
        a(f"s_lshl_b32 s{sWOFF}, s{sG}, 6")
        a(f"s_lshl_b32 s{sTMP}, s{sWV}, 4")
        a(f"s_add_u32 s{sWOFF}, s{sWOFF}, s{sTMP}")
        a(f"s_mul_i32 s{sWOFF}, s{sWOFF}, 1152")
        if c3_s is not None:
            a(f"s_mul_i32 s{sTMP}, s{c3_s}, 384")
            a(f"s_add_u32 s{sWOFF}, s{sWOFF}, s{sTMP}")
    def w3compute(units, rep, bcast):
        for t in range(4):
            q = aop(rep, f"quad_perm:[{t},{t},{t},{t}]") if bcast else aop(rep + t)
            for regs6, acc, ids in units:
                need(ids[t]); need(ids[4 + t // 2])
                mfma(acc, q, regs6[t], first=(t == 0))
                mfma(acc + 4 + 4 * (t & 1), q, regs6[4 + t // 2], first=(t < 2))
    def w3write(acc, part):
        for r in range(4): dpp("v_add_f32", acc + 4 + r, acc + 8 + r, acc + 4 + r, "row_ror:8")
        a(f"ds_write_b128 v{vXO}, {q4(acc)} offset:{LDS_R + 4096*part}")
        a(f"ds_write_b128 v{vXO}, {q4(acc+4)} offset:{LDS_R + 4096*(part+1)}")
    def reduce_part(lds_addr_v, voff, soff):
        for k in range(4): a(f"ds_read_b128 {q4(T+4*k)}, v{lds_addr_v} offset:{LDS_R + 1024*k}")
        a("s_waitcnt lgkmcnt(0)")
        sum4(T); tag(T)
        a(f"buffer_store_dwordx4 {q4(T)}, v{voff}, {srd(SWS)}, s{soff} offen sc1")

    def write_stamps():
        if not p.STAMPS: return
        a("s_waitcnt vmcnt(0)")
        stamp(11)
        a("s_waitcnt lgkmcnt(0)")
        a(f"s_lshl_b32 s{sTMP}, s2, 2")
        a(f"s_add_u32 s{sTMP}, s{sTMP}, s{sWV}")
        a(f"s_mul_i32 s{sTMP}, s{sTMP}, 96")
        a(f"s_add_u32 s{sTMP}, s{sTMP}, {STAMP_OFF}")
        a("v_mov_b32 v72, 0")
        a("s_mov_b64 exec, 1")
        for k in range(6):
            for r in range(4): a(f"v_mov_b32 v{76+4*k+r}, s{sST+4*k+r}")
        for k in range(6):
            a(f"buffer_store_dwordx4 {q4(76+4*k)}, v72, {srd(SWS)}, s{sTMP} offen offset:{16*k}")

    def path_F(with_w):
        a.restore(snap)
        win[0] = p.W_FW if with_w else p.W
        if p.STAMPS:
            for k in (9, 10): a(f"s_mov_b64 s[{sST+2*k}:{sST+2*k+1}], s[{sST}:{sST+1}]")
        for n in range(12): stream.append((f"G{n}", gload(n)))
        attention()
        DR = [RV + 4 * k for k in range(6)]
        WR = [RK + 4 * k for k in range(6)]
        for n in range(6): stream.append((f"D{n}", w3load(f"D{n}", n, DR[n], SDN, sDOFF)))
        vHP, vHG, sHP = T + 20, T + 21, sQOFF
        a(f"v_lshrrev_b32 v{T}, 1, v{vG}")
        a(f"v_lshlrev_b32 v{vHP}, 8, v{T}")
        a(f"v_lshl_add_u32 v{vHP}, v{vB}, 9, v{vHP}")
        a(f"v_lshl_add_u32 v{vHP}, v{vJ}, 5, v{vHP}")
        a(f"v_and_b32 v{T}, 1, v{vG}")
        a(f"v_lshl_add_u32 v{vHP}, v{T}, 4, v{vHP}")
        a(f"v_and_b32 v{T}, 3, v{vL}")
        a(f"v_lshlrev_b32 v{vHG}, 10, v{T}")
        a(f"v_bfe_u32 v{T}, v{vL}, 2, 1")
        a(f"v_lshl_add_u32 v{vHG}, v{T}, 9, v{vHG}")
        a(f"v_lshl_add_u32 v{vHG}, v{vB}, 8, v{vHG}")
        a(f"v_lshl_add_u32 v{vHG}, v{vG}, 4, v{vHG}")
        sH0, sH1, sH2 = 3, 4, 5
        a(f"s_mul_i32 s{sH0}, s{sF}, {3*4096}")
        a(f"s_add_u32 s{sH0}, s{sH0}, {WS_HP}")
        a(f"s_lshl_b32 s{sHP}, s{sR3}, 12")
        a(f"s_add_u32 s{sHP}, s{sHP}, s{sH0}")
        a(f"s_lshl_b32 s{sTMP}, s{sWV}, 10")
        a(f"s_add_u32 s{sHP}, s{sHP}, s{sTMP}")
        a(f"s_lshl_b32 s{sTMP}, s{sWV}, 6")
        a(f"s_add_u32 s{sH0}, s{sH0}, s{sTMP}")
        a(f"s_add_u32 s{sH1}, s{sH0}, 4096")
        a(f"s_add_u32 s{sH2}, s{sH0}, 8192")
        if with_w:
            a(f"s_lshl_b32 s{sG}, s{sX8}, 3")
            a(f"s_add_u32 s{sG}, s{sG}, s{sFB}")
            a(f"s_add_u32 s{sG}, s{sG}, 5")
            ogather_setup(); wsoff(sR3)
        sPUB, vPUB, vRA = 6, T + 18, T + 19
        a(f"s_mul_i32 s{sPUB}, s{sF}, 4608")
        a(f"s_add_u32 s{sPUB}, s{sPUB}, {WS_FP}")
        if with_w:
            a(f"s_mul_i32 s{sTMP}, s{sG}, 4608")
            a(f"s_add_u32 s{sTMP}, s{sTMP}, {WS_SP}")
            a(f"s_cmp_ge_u32 s{sWV}, 2")
            a(f"s_cselect_b32 s{sPUB}, s{sTMP}, s{sPUB}")
        a(f"s_mul_i32 s{sTMP}, s{sR3}, 768")
        a(f"s_add_u32 s{sPUB}, s{sPUB}, s{sTMP}")
        a(f"s_bitcmp1_b32 s{sWV}, 0")
        a(f"s_cselect_b64 vcc, -1, 0")
        a(f"v_cndmask_b32 v{vPUB}, v{vPF}, v{vPH}, vcc")
        a(f"s_lshl_b32 s{sTMP}, s{sWV}, 12")
        a(f"v_add_u32 v{vRA}, s{sTMP}, v{vL16}")
        sODD, sB1, sMAT = 96, 98, 100
        a(f"v_and_b32 v{T}, 1, v{vL}"); a(f"v_cmp_eq_u32 s[{sODD}:{sODD+1}], 1, v{T}")
        a(f"v_and_b32 v{T}, 2, v{vL}"); a(f"v_cmp_eq_u32 s[{sB1}:{sB1+1}], 2, v{T}")
        a(f"v_and_b32 v{T}, 4, v{vL}"); a(f"v_cmp_eq_u32 s[{sMAT}:{sMAT+1}], 4, v{T}")
        for n in range(12):
            q = aop(vXG + n)
            need(f"G{n}")
            mfma(accG, q, RG + 4 * n, first=(n == 0))
        tag(accG)
        stamp(6)
        a(f"buffer_store_dwordx4 {q4(accG)}, v{vHP}, {srd(SWS)}, s{sHP} offen sc1", vid="HS")
        while stream: issue()
        HG = T
        def hgather():
            for k, s in enumerate((sH0, sH1, sH2)):
                a(f"buffer_load_dwordx4 {q4(HG+4*k)}, v{vHG}, {srd(SWS)}, s{s} offen sc1", vid=f"HG{k}")
        if with_w:
            ogather()
            for n in range(6): stream.append((f"W{n}", w3load(f"W{n}", n, WR[n], SWO, sWOFF)))
            pump(2)
            hgather()
            while stream: pump()
            a.wait("OG1")
            ofinish()
        else:
            a.wait(p.HG_WAIT)
            hgather()
        a.wait("HG2")
        stamp(7)
        checked(hgather, [HG, HG + 4, HG + 8], HG + 12, "h")
        stamp(8)
        for k in (4, 8):
            a(f"v_pk_add_f32 v[{HG}:{HG+1}], v[{HG}:{HG+1}], v[{HG+k}:{HG+k+1}]")
            a(f"v_pk_add_f32 v[{HG+2}:{HG+3}], v[{HG+2}:{HG+3}], v[{HG+k+2}:{HG+k+3}]")
        k0, k1, s0, s1 = HG + 4, HG + 5, HG + 6, HG + 7
        a(f"v_cndmask_b32 v{s0}, v{HG+1}, v{HG}, s[{sODD}:{sODD+1}]")
        a(f"v_cndmask_b32 v{s1}, v{HG+3}, v{HG+2}, s[{sODD}:{sODD+1}]")
        a(f"v_cndmask_b32 v{k0}, v{HG}, v{HG+1}, s[{sODD}:{sODD+1}]")
        a(f"v_cndmask_b32 v{k1}, v{HG+2}, v{HG+3}, s[{sODD}:{sODD+1}]")
        dpp("v_add_f32", k0, s0, k0, "quad_perm:[1,0,3,2]")
        dpp("v_add_f32", k1, s1, k1, "quad_perm:[1,0,3,2]")
        a(f"v_cndmask_b32 v{s0}, v{k1}, v{k0}, s[{sB1}:{sB1+1}]")
        a(f"v_cndmask_b32 v{k0}, v{k0}, v{k1}, s[{sB1}:{sB1+1}]")
        dpp("v_add_f32", k0, s0, k0, "quad_perm:[2,3,0,1]")
        x, t, hh = HG, HG + 1, HG + 2
        bf16r(x, k0)
        c0 = -2.0 * math.sqrt(2.0 / math.pi) * LOG2E
        a(f"v_mul_f32 v{t}, v{x}, v{x}")
        a(f"v_mov_b32 v{hh}, {f32(c0)}")
        a(f"v_fmac_f32 v{hh}, {f32(c0 * 0.044715)}, v{t}")
        a(f"v_mul_f32 v{t}, v{hh}, v{x}")
        a(f"v_exp_f32 v{t}, v{t}")
        a(f"v_add_f32 v{t}, 1.0, v{t}")
        a(f"v_rcp_f32 v{t}, v{t}")
        a(f"v_mul_f32 v{t}, v{t}, v{x}")
        bf16r(t, t)
        a(f"v_cndmask_b32 v{t}, v{t}, v{x}, s[{sMAT}:{sMAT+1}]")
        a(f"v_mov_b32_dpp v{x}, v{t} row_shl:4 row_mask:0xf bank_mask:0x5")
        a(f"v_mov_b32_dpp v{x}, v{t} row_shr:4 row_mask:0xf bank_mask:0xa")
        a(f"v_mul_f32 v{hh}, v{t}, v{x}")
        a(f"v_cvt_pk_bf16_f32 v{hh}, v{hh}, v{hh}")
        w3compute([(DR, ACC3, [f"D{n}" for n in range(6)])], hh, True)
        if with_w:
            w3compute([(WR, RQ, [f"W{n}" for n in range(6)])], OG, False)
        w3write(ACC3, 0)
        if with_w: w3write(RQ, 2)
        a("s_waitcnt lgkmcnt(0)")
        a("s_barrier")
        done = a.newlabel("fdone")
        if not with_w:
            a(f"s_cmp_ge_u32 s{sWV}, 2")
            a.branch(f"s_cbranch_scc1 {done}")
        reduce_part(vRA, vPUB, sPUB)
        a.label(done)
        write_stamps()
        a("s_endpgm")

    def path_L():
        a.restore(snap)
        win[0] = p.W_L
        if p.STAMPS:
            for k in (6, 9, 10): a(f"s_mov_b64 s[{sST+2*k}:{sST+2*k+1}], s[{sST}:{sST+1}]")
        a(f"s_lshl_b32 s{sG}, s{sX8}, 3")
        a(f"s_add_u32 s{sG}, s{sG}, s{sU}")
        a(f"s_sub_u32 s{sG}, s{sG}, 27")
        wsoff(None)
        sW1, sW2 = 3, 4
        a(f"s_add_u32 s{sW1}, s{sWOFF}, 384")
        a(f"s_add_u32 s{sW2}, s{sWOFF}, 768")
        regs = [[RG + 4 * k for k in range(6)], [RG + 24 + 4 * k for k in range(6)], [RV + 4 * k for k in range(6)]]
        so = [sWOFF, sW1, sW2]
        for c in range(2):
            for n in range(6): stream.append((f"W{c}_{n}", w3load(f"W{c}_{n}", n, regs[c][n], SWO, so[c])))
        attention()
        for n in range(6): stream.append((f"W2_{n}", w3load(f"W2_{n}", n, regs[2][n], SWO, so[2])))
        ogather_setup()
        sRL, sRB, sRO = 5, 6, sDOFF
        a(f"s_mul_i32 s{sRL}, s{sX8}, 5")
        a(f"s_add_u32 s{sRL}, s{sRL}, s{sU}")
        a(f"s_sub_u32 s{sRL}, s{sRL}, 27")
        a(f"s_lshl_b32 s{sRO}, s{sRL}, 5")
        a(f"s_lshl_b32 s{sTMP}, s{sWV}, 3")
        a(f"s_add_u32 s{sRO}, s{sRO}, s{sTMP}")
        vRO, vRO2, vOO, vXX = vXG, vXG + 1, vXG + 2, vXG + 3
        a(f"v_lshrrev_b32 v{T}, 1, v{vL}")
        a(f"v_mul_u32_u24 v{vRO}, 4608, v{T}")
        a(f"v_and_b32 v{T}, 7, v{T}")
        a(f"v_mul_u32_u24 v{vRO2}, 4608, v{T}")
        a(f"v_and_b32 v{T}, 1, v{vL}")
        a(f"v_lshl_add_u32 v{vRO}, v{T}, 4, v{vRO}")
        a(f"v_lshl_add_u32 v{vRO2}, v{T}, 4, v{vRO2}")
        a(f"v_lshrrev_b32 v{T+1}, 1, v{vG}")
        a(f"v_and_b32 v{T+2}, 1, v{vG}")
        a(f"v_lshl_add_u32 v{T+1}, v{T+2}, 1, v{T+1}")
        a(f"v_lshl_add_u32 v{vOO}, v{T}, 2, v{T+1}")
        a(f"v_lshlrev_b32 v{vOO}, 1, v{vOO}")
        a(f"s_lshl_b32 s{sRB}, s{sRO}, 1")
        a(f"buffer_load_ushort v{vXX}, v{vOO}, {srd(SX)}, s{sRB} offen", vid="XX")
        a(f"v_cmp_lt_u32 vcc, 1, v{vI}")
        a(f"v_mov_b32 v{T}, {OOB}")
        a(f"v_cndmask_b32 v{vOO}, v{vOO}, v{T}, vcc")
        hooks["W2_2"] = ogather
        while stream: pump()
        a.wait("OG1")
        stamp(7)
        ofinish()
        stamp(8)
        accs = [ACC3, RQ, RK]
        w3compute([(regs[c], accs[c], [f"W{c}_{n}" for n in range(6)]) for c in range(3)], OG, False)
        for c in range(3): w3write(accs[c], 2 * c)
        sPUB, vPUB, vRA = sW1, T + 18, T + 19
        a(f"s_mul_i32 s{sPUB}, s{sG}, 4608")
        a(f"s_add_u32 s{sPUB}, s{sPUB}, {WS_SP}")
        a(f"s_lshr_b32 s{sTMP}, s{sWV}, 1")
        a(f"s_mul_i32 s{sTMP}, s{sTMP}, 768")
        a(f"s_add_u32 s{sW2}, s{sPUB}, 1536")
        a(f"s_add_u32 s{sPUB}, s{sPUB}, s{sTMP}")
        a(f"s_bitcmp1_b32 s{sWV}, 0")
        a(f"s_cselect_b64 vcc, -1, 0")
        a(f"v_cndmask_b32 v{vPUB}, v{vPF}, v{vPH}, vcc")
        a(f"s_lshl_b32 s{sTMP}, s{sWV}, 12")
        a(f"v_add_u32 v{vRA}, s{sTMP}, v{vL16}")
        a("s_waitcnt lgkmcnt(0)")
        a("s_barrier")
        reduce_part(vRA, vPUB, sPUB)
        skip = a.newlabel("lpub")
        a(f"s_cmp_ge_u32 s{sWV}, 2")
        a.branch(f"s_cbranch_scc1 {skip}")
        a(f"v_add_u32 v{vRA}, {4*4096}, v{vRA}")
        reduce_part(vRA, vPUB, sW2)
        a.label(skip)
        stamp(9)
        done = a.newlabel("ldone")
        a(f"s_cmp_ge_u32 s{sRL}, 36")
        a.branch(f"s_cbranch_scc1 {done}")
        sS0, sS1, sF0, sF1, sF2 = sKV0, sKV1, sW1, sW2, sQOFF
        a(f"s_lshl_b32 s{sTMP}, s{sRO}, 2")
        a(f"s_add_u32 s{sS0}, s{sTMP}, {WS_SP}")
        a(f"s_add_u32 s{sS1}, s{sTMP}, {WS_SP + 32*4608}")
        a(f"s_add_u32 s{sF0}, s{sTMP}, {WS_FP}")
        a(f"s_add_u32 s{sF1}, s{sTMP}, {WS_FP + 32*4608}")
        a(f"s_add_u32 s{sF2}, s{sTMP}, {WS_FP + 64*4608}")
        R = RG
        def rgather():
            for k, (s, v) in enumerate(((sS0, vRO), (sS1, vRO), (sF0, vRO), (sF1, vRO), (sF2, vRO2))):
                a(f"buffer_load_dwordx4 {q4(R+4*k)}, v{v}, {srd(SWS)}, s{s} offen sc1")
        rgather()
        a("s_waitcnt vmcnt(0)")
        checked(rgather, [R + 4 * k for k in range(5)], T, "r")
        stamp(10)
        Sx, Fx = R, R + 8
        for r in range(4): a(f"v_fmac_f32 v{Fx+r}, 0.25, v{R+16+r}".replace("0.25", f32(0.25)))
        for b in (Sx, Fx):
            a(f"v_pk_add_f32 v[{b}:{b+1}], v[{b}:{b+1}], v[{b+4}:{b+5}]")
            a(f"v_pk_add_f32 v[{b+2}:{b+3}], v[{b+2}:{b+3}], v[{b+6}:{b+7}]")
        for b in (Sx, Fx):
            a(f"v_permlane32_swap_b32 v{b}, v{b+1}")
            a(f"v_permlane32_swap_b32 v{b+2}, v{b+3}")
        for b in (Sx, Fx):
            a(f"v_add_f32 v{b}, v{b}, v{b+1}")
            a(f"v_add_f32 v{b+2}, v{b+2}, v{b+3}")
        for b in (Sx, Fx): a(f"v_permlane16_swap_b32 v{b}, v{b+2}")
        for b in (Sx, Fx): a(f"v_add_f32 v{b}, v{b}, v{b+2}")
        for ctl in ("quad_perm:[2,3,0,1]", "row_ror:4", "row_ror:8"):
            for b in (Fx, Sx): dpp("v_add_f32", b, b, b, ctl)
        bf16r(Fx, Fx)
        a(f"v_mul_f32 v{T}, {f32(-LOG2E)}, v{Fx}")
        a(f"v_exp_f32 v{T}, v{T}")
        bf16r(Sx, Sx)
        a(f"v_add_f32 v{T}, 1.0, v{T}")
        a(f"v_rcp_f32 v{T}, v{T}")
        a(f"v_lshlrev_b32 v{vXX}, 16, v{vXX}")
        a(f"v_mul_f32 v{T}, v{T}, v{Fx}")
        bf16r(T, T)
        a(f"v_mul_f32 v{T}, v{T}, v{Sx}")
        bf16r(T, T)
        a(f"v_add_f32 v{T}, v{T}, v{vXX}")
        a(f"v_cvt_pk_bf16_f32 v{T}, v{T}, v{T}")
        a(f"buffer_store_short v{T}, v{vOO}, {srd(SOUT)}, s{sRB} offen")
        a(f"s_cmp_lg_u32 s{sRO}, 0")
        a.branch(f"s_cbranch_scc1 {done}")
        a(f"s_lshl_b32 s{sTMP}, s{sT0+1}, 8")
        a(f"s_or_b32 s{sT}, s{sT0}, s{sTMP}")
        a(f"s_lshl_b32 s{sTMP}, s{sT0+2}, 16")
        a(f"s_or_b32 s{sT}, s{sT}, s{sTMP}")
        a(f"s_lshl_b32 s{sTMP}, s{sT0+3}, 24")
        a(f"s_or_b32 s{sT}, s{sT}, s{sTMP}")
        a(f"v_mov_b32 v{T+1}, s{sT}")
        a(f"v_mov_b32 v{T+2}, {WS_E}")
        a(f"buffer_store_dword v{T+1}, v{T+2}, {srd(SWS)}, 0 offen sc1")
        a.label(done)
        write_stamps()
        a("s_endpgm")

    path_F(False)
    a.raw("L_path_FW:")
    path_F(True)
    a.raw("L_path_L:")
    path_L()
    a.raw("L_end:")
    a("s_endpgm")
    a.raw("L_code_end:")
    a.raw('.section .rodata,"a"'); a.raw(".p2align 6"); a.raw(f".amdhsa_kernel {NAME}")
    a.raw(f"  .amdhsa_next_free_vgpr {NV}"); a.raw("  .amdhsa_next_free_sgpr 102"); a.raw(f"  .amdhsa_accum_offset {NV}")
    a.raw("  .amdhsa_group_segment_fixed_size 0"); a.raw("  .amdhsa_kernarg_size 96"); a.raw("  .amdhsa_user_sgpr_count 2")
    a.raw("  .amdhsa_user_sgpr_kernarg_segment_ptr 1"); a.raw("  .amdhsa_system_sgpr_workgroup_id_x 1"); a.raw(".end_amdhsa_kernel")
    return a.text()

if __name__ == "__main__":
    out = sys.argv[1]
    p = P()
    for kv in sys.argv[2:]:
        k, v = kv.split("=")
        cur = getattr(p, k)
        setattr(p, k, (v == "1") if isinstance(cur, bool) else type(cur)(v))
    open(out, "w").write(gen(p))
```

```python
import sys, math, struct
sys.path.insert(0, "gen")
from asmlib import Asm

NAME = "recurrent_scan__sliding_block_cached__geglu_ffn__decode_kernel"
HEADER = open("recurrent_scan__sliding_block_cached__geglu_ffn__decode.s.ref").read().split("; Override launch")[0]

def f32(x): return "0x%08x" % struct.unpack("<I", struct.pack("<f", x))[0]
LOG2E = 1.4426950408889634

WS_E = 0
WS_QP = 0x1000
OP_STRIDE = 1152
WS_OP = WS_QP + 256 * 1024
WS_HP = WS_OP + 256 * OP_STRIDE
WS_SP = WS_HP + 216 * 4096
WS_FP = WS_SP + 64 * 4608
WS_END = WS_FP + 72 * 4608
STAMP_OFF = 200 * 1024 * 1024
OOB = 0x40000000

LDS_Q = 0
LDS_QF = 4096
LDS_ML = 4608
LDS_O = 5120
LDS_R = 9216
LDS_SIZE = LDS_R + 6 * 4096

class P:
    W = 5
    W_FW = 6
    W_L = 5
    INIT_K = 5
    QG_AFTER = "V4"
    HG_WAIT = "D2"
    STAMPS = False
    DBG = False
    SPIN = 1 << 16

def q4(b): return f"v[{b}:{b+3}]"

def gen(p):
    a = Asm()
    SX, SK, SV, SWQ, SWO, SDN, SWS, SOUT = 8, 12, 16, 20, 24, 28, 32, 36
    sGATE, sUP = 40, 42
    sWV, sKVH, sJ, sU, sX8 = 44, 45, 46, 47, 48
    sT, sT0 = 49, 50
    sQOFF, sKV0, sKV1 = 54, 55, 56
    sFB, sR3, sF = 57, 58, 59
    sTMP, sTMP2, sTMP3 = 60, 61, 62
    sSPIN = 63
    sSTEP = 64
    sDOFF, sWOFF = 66, 67
    sONES, sHI = 68, 69
    sG = 7
    sST = 72
    def srd(b): return f"s[{b}:{b+3}]"
    nst = [0]
    def stamp(k):
        if p.STAMPS: a(f"s_memrealtime s[{sST+2*k}:{sST+2*k+1}]")

    vL, vG, vI, vJ, vB = 1, 2, 3, 4, 5
    vFF, vL16 = 6, 7
    vM = 8
    vQ, vQ4, vK, vV, vW, vWh, vPF, vPH = 12, 13, 14, 15, 16, 17, 18, 19
    vGA = 20
    vMB, vRS = 22, 23
    vA0, vA1 = 24, 28
    vXQ = 32
    vPFD = 37
    vXO = 38
    vXG = 40
    vXR = 52
    accQ, accO, accG = 60, 64, 68
    T = 72
    RQ, RK, RV, RG = 104, 124, 156, 188
    ACC3 = 236
    NV = 248

    a.raw(HEADER.rstrip())
    a.raw(f"; @launch grid=(256,1,1) block=(256,1,1) lds={LDS_SIZE}")
    a.raw('.amdgcn_target "amdgcn-amd-amdhsa--gfx950"')
    a.raw(".text"); a.raw(f".globl {NAME}"); a.raw(".p2align 8"); a.raw(f".type {NAME},@function")
    a.raw(f"{NAME}:")
    stamp(0)
    a("s_cmp_ge_u32 s2, 256")
    a("s_cbranch_scc1 L_end")
    for b, off in ((SX, 0), (SWQ, 24), (SK, 8), (SV, 16), (SWS, 88), (SWO, 32), (SDN, 64), (SOUT, 72)):
        a(f"s_load_dwordx2 s[{b}:{b+1}], s[0:1], {off}")
    a(f"s_load_dwordx4 s[{sGATE}:{sGATE+3}], s[0:1], 48")
    a("s_getpc_b64 s[4:5]")
    a.raw("L_pc:")
    a("v_lshlrev_b32 v72, 7, v0")
    a("v_min_u32 v72, L_code_end-L_pc-4, v72")
    a(f"global_load_dword v{vPFD}, v72, s[4:5]", vid="P")
    a(f"v_and_b32 v{vL}, 63, v0")
    a("v_lshrrev_b32 v73, 6, v0")
    a(f"v_lshrrev_b32 v{vG}, 4, v{vL}")
    a(f"v_readfirstlane_b32 s{sWV}, v73")
    a(f"v_and_b32 v{vI}, 15, v0")
    a(f"v_and_b32 v{vJ}, 7, v0")
    a(f"v_bfe_u32 v{vB}, v0, 3, 1")
    for b, n in ((SX, 2304), (SWQ, 576 * 8192), (SK, 1 << 25), (SV, 1 << 25), (SWS, 1 << 28 if p.STAMPS else WS_END),
                 (SWO, 4096 * 1152), (SDN, 4608 * 1152), (SOUT, 2304)):
        a(f"s_mov_b32 s{b+2}, {n}")
        a(f"s_mov_b32 s{b+3}, 0x20000")
    a(f"s_and_b32 s{sX8}, s2, 7")
    a(f"s_lshr_b32 s{sU}, s2, 3")
    a(f"s_lshr_b32 s{sTMP}, s{sU}, 4")
    a(f"s_lshl_b32 s{sKVH}, s{sX8}, 1")
    a(f"s_add_u32 s{sKVH}, s{sKVH}, s{sTMP}")
    a(f"s_and_b32 s{sJ}, s{sU}, 15")
    a(f"s_lshr_b32 s{sTMP}, s{sJ}, 1")
    a(f"s_mul_i32 s{sTMP3}, s{sTMP}, 72")
    a(f"s_mul_i32 s{sTMP2}, s{sWV}, 18")
    a(f"s_add_u32 s{sTMP3}, s{sTMP3}, s{sTMP2}")
    a(f"s_lshl_b32 s{sQOFF}, s{sTMP3}, 13")
    a(f"s_and_b32 s{sTMP2}, s{sJ}, 1")
    a(f"s_lshl_b32 s{sKV0}, s{sKVH}, 1")
    a(f"s_add_u32 s{sKV0}, s{sKV0}, s{sTMP2}")
    a(f"s_lshl_b32 s{sKV0}, s{sKV0}, 8")
    a(f"s_add_u32 s{sQOFF}, s{sQOFF}, s{sKV0}")
    a(f"s_lshl_b32 s{sKV0}, s{sTMP2}, 4")
    a(f"s_add_u32 s{sKV0}, s{sKV0}, s{sKVH}")
    a(f"s_lshl_b32 s{sKV0}, s{sKV0}, 20")
    a(f"s_lshl_b32 s{sTMP}, s{sTMP}, 15")
    a(f"s_add_u32 s{sKV0}, s{sKV0}, s{sTMP}")
    a(f"s_lshl_b32 s{sTMP}, s{sWV}, 13")
    a(f"s_add_u32 s{sKV0}, s{sKV0}, s{sTMP}")
    a(f"s_add_u32 s{sKV0}, s{sKV0}, {3072*256}")
    a(f"s_add_u32 s{sKV1}, s{sKV0}, 4096")
    a(f"s_lshl_b32 s{sTMP3}, s{sTMP3}, 1")
    a(f"s_mul_i32 s{sFB}, s{sU}, 43")
    a(f"s_lshr_b32 s{sFB}, s{sFB}, 7")
    a(f"s_mul_i32 s{sTMP}, s{sFB}, 3")
    a(f"s_sub_u32 s{sR3}, s{sU}, s{sTMP}")
    a(f"s_mul_i32 s{sF}, s{sX8}, 9")
    a(f"s_add_u32 s{sF}, s{sF}, s{sFB}")
    a(f"v_mul_u32_u24 v74, 1152, v{vB}")
    a(f"v_lshl_add_u32 v75, v{vG}, 3, v{vJ}")
    a(f"v_lshl_add_u32 v76, v75, 4, v74")
    a(f"v_lshl_add_u32 v77, v75, 2, v74")
    a(f"v_lshl_add_u32 v78, v{vG}, 3, v74")
    a(f"v_and_b32 v80, 1, v{vG}")
    a(f"v_lshl_add_u32 v79, v80, 1, v74")
    a(f"v_lshlrev_b32 v81, 4, v{vI}")
    a(f"v_lshl_add_u32 v{vQ}, v{vG}, 15, v81")
    a(f"v_lshl_add_u32 v{vQ4}, v80, 13, v81")
    a(f"v_lshl_add_u32 v{vV}, v{vG}, 9, v81")
    a(f"v_bfe_u32 v82, v0, 2, 2")
    a(f"v_lshlrev_b32 v{vK}, 9, v82")
    a(f"v_and_b32 v82, 1, v0")
    a(f"v_lshl_add_u32 v{vK}, v82, 8, v{vK}")
    a(f"v_bfe_u32 v82, v0, 1, 1")
    a(f"v_lshl_add_u32 v{vK}, v82, 6, v{vK}")
    a(f"v_lshl_add_u32 v{vK}, v{vG}, 4, v{vK}")
    a(f"v_mul_u32_u24 v83, 24, v{vG}")
    a(f"v_add_u32 v83, v83, v74")
    a("s_waitcnt lgkmcnt(0)")
    stamp(1)
    XS = 84
    XA, XB = 94, 93
    a(f"buffer_load_dwordx4 {q4(XS)}, v76, {srd(SX)}, 0 offen", vid="X0")
    a(f"buffer_load_dwordx4 {q4(XS+4)}, v76, {srd(SX)}, 0 offen offset:512", vid="X1")
    a(f"buffer_load_dword v{XS+8}, v77, {srd(SX)}, 0 offen offset:1024", vid="X2")
    a(f"buffer_load_dwordx2 v[{XA}:{XA+1}], v78, {srd(SX)}, s{sTMP3} offen", vid="XA")
    a(f"buffer_load_ushort v{XB}, v79, {srd(SX)}, s{sTMP3} offen offset:32", vid="XB")
    for t in range(4):
        a(f"buffer_load_dwordx4 {q4(RQ+4*t)}, v{vQ}, {srd(SWQ)}, s{sQOFF} offen nt", vid=f"Q{t}")
        a(f"s_add_u32 s{sQOFF}, s{sQOFF}, {8192 if t < 3 else 13*8192}")
    a(f"buffer_load_dwordx4 {q4(RQ+16)}, v{vQ4}, {srd(SWQ)}, s{sQOFF} offen nt", vid="Q4")
    a(f"s_load_dword s{sT}, s[{SWS}:{SWS+1}], {WS_E}")

    stream = []
    def kload(n):
        o, s = n >> 1, n & 1
        return lambda: a(f"buffer_load_dwordx4 {q4(RK+4*n)}, v{vK}, {srd(SK)}, s{sKV0 if o < 2 else sKV1} offen offset:{(o&1)*2048 + s*128} nt", vid=f"K{n}")
    def vload(n):
        o, kb = n >> 1, n & 1
        return lambda: a(f"buffer_load_dwordx4 {q4(RV+4*n)}, v{vV}, {srd(SV)}, s{sKV0 if o < 2 else sKV1} offen offset:{(o&1)*2048 + kb*256} nt", vid=f"V{n}")
    for n in range(8): stream.append((f"K{n}", kload(n)))
    for n in range(8): stream.append((f"V{n}", vload(n)))
    win = [p.W]
    hooks = {}
    def issue():
        vid, fn = stream.pop(0); fn()
        if vid in hooks: hooks.pop(vid)()
    def pump(n=1):
        for _ in range(n):
            if not stream: return
            a.vmwait_n(win[0] - 1); issue()
    def need(vid):
        while not (vid in a.vm and a.arrived(vid)):
            if stream: pump()
            else: a.wait(vid)

    for _ in range(p.INIT_K): issue()
    a(f"s_mul_i32 s{sTMP}, s{sR3}, 192")
    a(f"s_mul_i32 s{sTMP2}, s{sWV}, 48")
    a(f"s_add_u32 s{sTMP}, s{sTMP}, s{sTMP2}")
    a(f"s_lshl_b32 s{sTMP2}, s{sTMP}, 1")
    a(f"buffer_load_dwordx4 {q4(vXR)}, v83, {srd(SX)}, s{sTMP2} offen", vid="XC")
    a(f"buffer_load_dwordx2 v[{vXR+4}:{vXR+5}], v83, {srd(SX)}, s{sTMP2} offen offset:16", vid="XD")
    a(f"s_mul_i32 s{sTMP}, s{sTMP}, 9216")
    a(f"s_lshl_b32 s{sTMP2}, s{sF}, 7")
    a(f"s_add_u32 s{sTMP}, s{sTMP}, s{sTMP2}")
    a(f"v_mul_u32_u24 v72, {12*9216}, v{vG}")
    a(f"v_lshl_add_u32 v72, v{vJ}, 4, v72")
    a(f"v_add_u32 v72, s{sTMP}, v72")
    a(f"v_cmp_eq_u32 vcc, 1, v{vB}")
    a(f"v_mov_b32 v73, s{sGATE}")
    a(f"v_mov_b32 v75, s{sUP}")
    a(f"v_cndmask_b32 v{vGA}, v73, v75, vcc")
    a(f"v_mov_b32 v73, s{sGATE+1}")
    a(f"v_mov_b32 v75, s{sUP+1}")
    a(f"v_cndmask_b32 v{vGA+1}, v73, v75, vcc")
    a(f"v_add_co_u32 v{vGA}, vcc, v{vGA}, v72")
    a(f"v_addc_co_u32 v{vGA+1}, vcc, 0, v{vGA+1}, vcc")
    a(f"s_mov_b32 s{sSTEP}, 9216")
    a(f"s_mov_b32 s{sSTEP+1}, 0")
    a(f"s_mov_b32 s{sONES}, 0x3f803f80")
    a(f"s_mov_b32 s{sHI}, 0xffff0000")
    a(f"v_mov_b32 v{vFF}, 0xff")
    a(f"v_lshlrev_b32 v{vL16}, 4, v{vL}")
    a(f"v_and_b32 v72, 1, v0")
    a(f"v_lshlrev_b32 v72, 4, v72")
    a(f"v_mov_b32 v73, 0xffff")
    a(f"v_lshlrev_b32 v72, v72, v73")
    a(f"v_lshrrev_b32 v73, 1, v{vJ}")
    for r in range(4):
        a(f"v_cmp_eq_u32 vcc, {r}, v73")
        a(f"v_cndmask_b32 v{vM+r}, 0, v72, vcc")
    a(f"v_mul_u32_u24 v72, {4*1152}, v{vG}")
    a(f"v_add_u32 v{vW}, v72, v81")
    a(f"v_add_u32 v72, v72, v74")
    a(f"v_lshl_add_u32 v{vWh}, v{vJ}, 4, v72")
    a(f"v_add_u32 v{vWh}, 256, v{vWh}")
    a(f"v_lshrrev_b32 v75, 1, v{vG}")
    a(f"v_mul_u32_u24 v72, 2304, v75")
    a(f"v_lshl_add_u32 v72, v80, 4, v72")
    a(f"v_lshl_add_u32 v{vPF}, v{vI}, 5, v72")
    a(f"v_lshl_add_u32 v{vPH}, v{vJ}, 5, v72")
    a(f"v_lshl_add_u32 v{vPH}, v{vB}, 30, v{vPH}")
    a(f"v_add_u32 v{vPH}, 512, v{vPH}")

    def bf16r(dst, src, tmp=None):
        tmp = dst if tmp is None else tmp
        a(f"v_cvt_pk_bf16_f32 v{tmp}, v{src}, v{src}")
        a(f"v_and_b32 v{dst}, s{sHI}, v{tmp}")
    def dpp(op, d, s0, s1, ctl):
        a(f"{op}_dpp v{d}, v{s0}, v{s1} {ctl} row_mask:0xf bank_mask:0xf")
    def red8(op, rs):
        for ctl in ("quad_perm:[1,0,3,2]", "quad_perm:[2,3,0,1]", "row_half_mirror"):
            for r in rs: dpp(op, r, r, r, ctl)
    def redg(op, rs, tmps):
        for sw in ("v_permlane16_swap_b32", "v_permlane32_swap_b32"):
            for r, t in zip(rs, tmps): a(f"v_mov_b32 v{t}, v{r}")
            for r, t in zip(rs, tmps): a(f"{sw} v{r}, v{t}")
            for r, t in zip(rs, tmps): a(f"{op} v{r}, v{r}, v{t}")

    a.wait("X2")
    stamp(2)
    sm, sq = 72, 73
    a(f"v_mov_b32 v{sm}, 0"); a(f"v_mov_b32 v{sq}, 0")
    for k in range(9):
        a(f"v_dot2c_f32_bf16 v{sm}, s{sONES}, v{XS+k}")
        a(f"v_dot2c_f32_bf16 v{sq}, v{XS+k}, v{XS+k}")
    red8("v_add_f32", [sm, sq])
    redg("v_add_f32", [sm, sq], [76, 77])
    a(f"v_mul_f32 v{sm}, {f32(1/576)}, v{sm}")
    a(f"v_mul_f32 v{sq}, {f32(1/576)}, v{sq}")
    a(f"v_fma_f32 v{sq}, -v{sm}, v{sm}, v{sq}")
    a(f"v_max_f32 v{sq}, 0, v{sq}")
    bf16r(vMB, sm); bf16r(sq, sq)
    a(f"v_add_f32 v{sq}, {f32(1e-5)}, v{sq}")
    bf16r(sq, sq)
    a(f"v_sqrt_f32 v{sq}, v{sq}")
    bf16r(sq, sq)
    a(f"v_rcp_f32 v{vRS}, v{sq}")

    def normalise(raws, dst, tmp):
        n = len(raws)
        for k, (r, h) in enumerate(raws):
            if h: a(f"v_and_b32 v{tmp+k}, s{sHI}, v{r}")
            else: a(f"v_lshlrev_b32 v{tmp+k}, 16, v{r}")
        for k in range(n): a(f"v_sub_f32 v{tmp+k}, v{tmp+k}, v{vMB}")
        for k in range(n): a(f"v_cvt_pk_bf16_f32 v{tmp+k}, v{tmp+k}, v{tmp+k}")
        for k in range(n): a(f"v_and_b32 v{tmp+k}, s{sHI}, v{tmp+k}")
        for k in range(n): a(f"v_mul_f32 v{tmp+k}, v{tmp+k}, v{vRS}")
        for k in range(n): a(f"v_cvt_pk_bf16_f32 v{dst+k}, v{tmp+k}, v{tmp+k}")
    a.wait("XB")
    normalise([(XA, 0), (XA, 1), (XA+1, 0), (XA+1, 1), (XB, 0)], vXQ, 76)
    a(f"v_cmp_gt_u32 vcc, 2, v{vG}")
    a(f"v_cndmask_b32 v{vXQ+4}, 0, v{vXQ+4}, vcc")

    flip = [0]
    def aop(rep, ctl=None):
        q = (vA0, vA1)[flip[0]]; flip[0] ^= 1
        for r in range(4):
            if ctl: dpp("v_and_b32", q + r, rep, vM + r, ctl)
            else: a(f"v_and_b32 v{q+r}, v{rep}, v{vM+r}")
        return q
    def mfma(d, A, B, first=False):
        a(f"v_mfma_f32_16x16x32_bf16 {q4(d)}, {q4(A)}, {q4(B)}, {'0' if first else q4(d)}")

    a("s_waitcnt lgkmcnt(0)")
    for k in range(4):
        a(f"s_lshr_b32 s{sT0+k}, s{sT}, {8*k}")
        a(f"s_add_u32 s{sT0+k}, s{sT0+k}, 1")
        a(f"s_and_b32 s{sT0+k}, s{sT0+k}, 0xff")
    def tag(b):
        for k in range(4): a(f"v_bfi_b32 v{b+k}, v{vFF}, s{sT0+k}, v{b+k}")
    def untag(quads, acc):
        allr = []
        for b in quads:
            for k in range(4):
                a(f"v_xor_b32 v{b+k}, s{sT0+k}, v{b+k}"); allr.append(b + k)
        a(f"v_or3_b32 v{acc}, v{allr[0]}, v{allr[1]}, v{allr[2]}")
        rest = allr[3:]
        while len(rest) >= 2:
            a(f"v_or3_b32 v{acc}, v{acc}, v{rest[0]}, v{rest[1]}"); rest = rest[2:]
        if rest: a(f"v_or_b32 v{acc}, v{acc}, v{rest[0]}")
        a(f"v_and_b32 v{acc}, v{vFF}, v{acc}")
        a(f"v_cmp_ne_u32 vcc, 0, v{acc}")
    def checked(loads, quads, acc, name):
        top, ok = a.newlabel(name + "_chk"), a.newlabel(name + "_ok")
        a(f"s_mov_b32 s{sSPIN}, {p.SPIN}")
        a.label(top)
        untag(quads, acc)
        a("s_cmp_eq_u64 vcc, 0")
        a.branch(f"s_cbranch_scc1 {ok}")
        a.counting = False
        loads()
        a.counting = True
        a(f"s_sub_u32 s{sSPIN}, s{sSPIN}, 1")
        a(f"s_cmp_eq_u32 s{sSPIN}, 0")
        a("s_cbranch_scc1 L_end")
        a("s_waitcnt vmcnt(0)")
        a.branch(f"s_branch {top}")
        a.label(ok)

    for t in range(5):
        q = aop(vXQ + t)
        a.wait(f"Q{t}")
        mfma(accQ, q, RQ + 4 * t, first=(t == 0))
    stamp(3)
    a(f"s_lshl_b32 s{sTMP}, s{sWV}, 10")
    a(f"v_add_u32 v72, s{sTMP}, v{vL16}")
    a(f"v_mov_b32 v{vXO}, v72")
    a(f"ds_write_b128 v72, {q4(accQ)} offset:{LDS_Q}")
    pump()
    a("s_waitcnt lgkmcnt(0)")
    a("s_barrier")
    skip = a.newlabel("qpub")
    a(f"s_cmp_lg_u32 s{sWV}, 0")
    a.branch(f"s_cbranch_scc1 {skip}")
    for k in range(4): a(f"ds_read_b128 {q4(T+4*k)}, v{vL16} offset:{LDS_Q + 1024*k}")
    a(f"s_and_b32 s{sTMP}, s{sJ}, 1")
    a(f"s_lshl_b32 s{sTMP2}, s{sKVH}, 1")
    a(f"s_add_u32 s{sTMP}, s{sTMP}, s{sTMP2}")
    a(f"s_lshl_b32 s{sTMP}, s{sTMP}, 3")
    a(f"s_lshr_b32 s{sTMP2}, s{sJ}, 1")
    a(f"s_add_u32 s{sTMP}, s{sTMP}, s{sTMP2}")
    a(f"s_lshl_b32 s{sTMP}, s{sTMP}, 10")
    a(f"s_add_u32 s{sTMP}, s{sTMP}, {WS_QP}")
    def d_off512(dst, tmp):
        a(f"v_lshrrev_b32 v{tmp}, 1, v{vG}")
        a(f"v_lshlrev_b32 v{dst}, 9, v{tmp}")
        a(f"v_lshl_add_u32 v{dst}, v{vI}, 5, v{dst}")
        a(f"v_and_b32 v{tmp}, 1, v{vG}")
        a(f"v_lshl_add_u32 v{dst}, v{tmp}, 4, v{dst}")
    d_off512(T + 16, T + 17)
    a("s_waitcnt lgkmcnt(0)")
    def sum4(b):
        a(f"v_pk_add_f32 v[{b}:{b+1}], v[{b}:{b+1}], v[{b+4}:{b+5}]")
        a(f"v_pk_add_f32 v[{b+2}:{b+3}], v[{b+2}:{b+3}], v[{b+6}:{b+7}]")
        a(f"v_pk_add_f32 v[{b+8}:{b+9}], v[{b+8}:{b+9}], v[{b+12}:{b+13}]")
        a(f"v_pk_add_f32 v[{b+10}:{b+11}], v[{b+10}:{b+11}], v[{b+14}:{b+15}]")
        a(f"v_pk_add_f32 v[{b}:{b+1}], v[{b}:{b+1}], v[{b+8}:{b+9}]")
        a(f"v_pk_add_f32 v[{b+2}:{b+3}], v[{b+2}:{b+3}], v[{b+10}:{b+11}]")
    sum4(T); tag(T)
    a.counting = False
    a(f"buffer_store_dwordx4 {q4(T)}, v{T+16}, {srd(SWS)}, s{sTMP} offen sc1")
    a.counting = True
    a.label(skip)
    pump()
    a.wait("XD")
    normalise([(vXR + k // 2, k & 1) for k in range(6)], vXG, T)
    pump()
    normalise([(vXR + 3 + k // 2, k & 1) for k in range(6)], vXG + 6, T)
    pump()
    QG = 96
    vQGo = 95
    sQG = sQOFF
    a(f"s_lshl_b32 s{sQG}, s{sKVH}, 1")
    a(f"s_lshr_b32 s{sTMP}, s{sWV}, 1")
    a(f"s_add_u32 s{sQG}, s{sQG}, s{sTMP}")
    a(f"s_lshl_b32 s{sQG}, s{sQG}, 13")
    a(f"s_and_b32 s{sTMP}, s{sJ}, 1")
    a(f"s_lshl_b32 s{sTMP}, s{sTMP}, 9")
    a(f"s_add_u32 s{sQG}, s{sQG}, s{sTMP}")
    a(f"s_and_b32 s{sTMP}, s{sWV}, 1")
    a(f"s_lshl_b32 s{sTMP}, s{sTMP}, 8")
    a(f"s_add_u32 s{sQG}, s{sQG}, s{sTMP}")
    a(f"s_add_u32 s{sQG}, s{sQG}, {WS_QP}")
    a(f"s_add_u32 s{sTMP3}, s{sQG}, 4096")
    a(f"v_lshlrev_b32 v{vQGo}, 4, v{vI}")
    a(f"v_lshl_add_u32 v{vQGo}, v{vG}, 10, v{vQGo}")
    def qgather():
        a(f"buffer_load_dwordx4 {q4(QG)}, v{vQGo}, {srd(SWS)}, s{sQG} offen sc1", vid="QG0")
        a(f"buffer_load_dwordx4 {q4(QG+4)}, v{vQGo}, {srd(SWS)}, s{sTMP3} offen sc1", vid="QG1")
    hooks[p.QG_AFTER] = qgather
    a(f"s_lshl_b32 s{sDOFF}, s{sF}, 6")
    a(f"s_lshl_b32 s{sTMP}, s{sWV}, 4")
    a(f"s_add_u32 s{sDOFF}, s{sDOFF}, s{sTMP}")
    a(f"s_mul_i32 s{sDOFF}, s{sDOFF}, 1152")
    a(f"s_mul_i32 s{sTMP2}, s{sR3}, 384")
    a(f"s_add_u32 s{sDOFF}, s{sDOFF}, s{sTMP2}")
    while stream: pump()
    assert not hooks
    a(f"s_cmp_ge_u32 s{sU}, 27")
    a.branch("s_cbranch_scc1 L_path_L")
    a(f"s_cmp_lt_u32 s{sU}, 9")
    a.branch("s_cbranch_scc1 L_path_FW")
    snap = a.snapshot()

    def gload(n):
        def f():
            a(f"global_load_dwordx4 {q4(RG+4*n)}, v[{vGA}:{vGA+1}], off nt", vid=f"G{n}")
            if n < 11: a(f"v_lshl_add_u64 v[{vGA}:{vGA+1}], s[{sSTEP}:{sSTEP+1}], 0, v[{vGA}:{vGA+1}]")
        return f
    def w3load(name, n, reg, sr, soff, extra=0):
        if n < 4: return lambda: a(f"buffer_load_dwordx4 {q4(reg)}, v{vW}, {srd(sr)}, s{soff} offen offset:{n*1152} nt", vid=name)
        return lambda: a(f"buffer_load_dwordx4 {q4(reg)}, v{vWh}, {srd(sr)}, s{soff} offen offset:{(n-4)*2304} nt", vid=name)

    def attention():
        need("QG1")
        stamp(4)
        checked(qgather, [QG, QG + 4], T, "q")
        for k in range(4): a(f"v_add_f32 v{QG+k}, v{QG+k}, v{QG+4+k}")
        a(f"v_permlane32_swap_b32 v{QG}, v{QG+1}")
        a(f"v_permlane32_swap_b32 v{QG+2}, v{QG+3}")
        a(f"v_add_f32 v{QG}, v{QG}, v{QG+1}")
        a(f"v_add_f32 v{QG+2}, v{QG+2}, v{QG+3}")
        a(f"v_lshrrev_b32 v{T}, 1, v{vG}")
        a(f"v_and_b32 v{T+1}, 1, v{vG}")
        a(f"v_permlane16_swap_b32 v{QG}, v{QG+2}")
        a(f"v_lshl_add_u32 v{T}, v{T+1}, 1, v{T}")
        a(f"v_lshlrev_b32 v{T}, 1, v{T}")
        a(f"v_add_f32 v{QG}, v{QG}, v{QG+2}")
        a(f"v_lshl_add_u32 v{T}, v{vI}, 3, v{T}")
        a(f"s_lshl_b32 s{sTMP}, s{sWV}, 7")
        a(f"v_cvt_pk_bf16_f32 v{QG}, v{QG}, v{QG}")
        a(f"v_add_u32 v{T}, s{sTMP}, v{T}")
        a(f"ds_write_b16 v{T}, v{QG} offset:{LDS_QF}")
        a(f"v_and_b32 v{T+1}, 1, v{vL}")
        a(f"v_lshl_add_u32 v{T+1}, v{T+1}, 2, v{vG}")
        a(f"v_lshlrev_b32 v{T+1}, 4, v{T+1}")
        a(f"v_lshl_add_u32 v{T+1}, v{vB}, 8, v{T+1}")
        a("s_waitcnt lgkmcnt(0)")
        a("s_barrier")
        a(f"ds_read_b128 {q4(QG)}, v{T+1} offset:{LDS_QF}")
        a(f"ds_read_b128 {q4(QG+4)}, v{T+1} offset:{LDS_QF+128}")
        need("K7")
        a("s_waitcnt lgkmcnt(0)")
        S = RQ
        for o in range(4): mfma(S + 4 * o, RK + 8 * o, QG, first=True)
        for o in range(4): mfma(S + 4 * o, RK + 8 * o + 4, QG + 4)
        pump()
        sc = T
        for o in range(4):
            for kb in range(2):
                a(f"v_mov_b32_dpp v{sc+2*o+kb}, v{S+4*o+kb} quad_perm:[0,0,2,2] row_mask:0xf bank_mask:0xf")
        for o in range(4):
            for kb in range(2):
                dpp("v_add_f32", sc + 2 * o + kb, S + 4 * o + 2 + kb, sc + 2 * o + kb, "quad_perm:[1,1,3,3]")
        pk = T + 8
        def round8():
            for o in range(4): a(f"v_cvt_pk_bf16_f32 v{pk+o}, v{sc+2*o}, v{sc+2*o+1}")
            for o in range(4):
                a(f"v_lshlrev_b32 v{sc+2*o}, 16, v{pk+o}")
                a(f"v_and_b32 v{sc+2*o+1}, s{sHI}, v{pk+o}")
        round8()
        for k in range(8): a(f"v_mul_f32 v{sc+k}, {f32(128 ** -0.5)}, v{sc+k}")
        round8()
        pump()
        m, l = T + 12, T + 13
        a(f"v_max3_f32 v{m}, v{sc}, v{sc+1}, v{sc+2}")
        a(f"v_max3_f32 v{l}, v{sc+3}, v{sc+4}, v{sc+5}")
        a(f"v_max3_f32 v{m}, v{m}, v{sc+6}, v{sc+7}")
        a(f"v_max_f32 v{m}, v{m}, v{l}")
        redg("v_max_f32", [m], [T + 14])
        for k in range(8): a(f"v_sub_f32 v{sc+k}, v{sc+k}, v{m}")
        for k in range(8): a(f"v_mul_f32 v{sc+k}, {f32(LOG2E)}, v{sc+k}")
        for k in range(8): a(f"v_exp_f32 v{sc+k}, v{sc+k}")
        a(f"v_add_f32 v{l}, v{sc}, v{sc+1}")
        for k in range(2, 8): a(f"v_add_f32 v{l}, v{l}, v{sc+k}")
        for k in range(8): a(f"v_cvt_pk_bf16_f32 v{sc+k}, v{sc+k}, v{sc+k}")
        redg("v_add_f32", [l], [T + 14])
        pump()
        need("V7")
        for n in range(8):
            q = aop(sc + n)
            mfma(accO, q, RV + 4 * n, first=(n == 0))
        a(f"s_lshl_b32 s{sTMP}, s{sWV}, 3")
        a(f"v_lshlrev_b32 v{T+14}, 5, v{vB}")
        a(f"v_add_u32 v{T+14}, s{sTMP}, v{T+14}")
        a(f"ds_write_b64 v{T+14}, v[{m}:{l}] offset:{LDS_ML}")
        a(f"ds_write_b128 v{vXO}, {q4(accO)} offset:{LDS_O}")
        stamp(5)
        pump()
        a("s_waitcnt lgkmcnt(0)")
        a("s_barrier")
        skip = a.newlabel("opub")
        a(f"s_cmp_lg_u32 s{sWV}, 1")
        a.branch(f"s_cbranch_scc1 {skip}")
        ml = T + 16
        a(f"v_lshrrev_b32 v{ml+8}, 1, v{vG}")
        a(f"v_lshlrev_b32 v{ml+9}, 5, v{ml+8}")
        a(f"ds_read_b128 {q4(ml)}, v{ml+9} offset:{LDS_ML}")
        a(f"ds_read_b128 {q4(ml+4)}, v{ml+9} offset:{LDS_ML+16}")
        for k in range(4): a(f"ds_read_b128 {q4(T+4*k)}, v{vL16} offset:{LDS_O + 1024*k}")
        a(f"s_and_b32 s{sTMP}, s{sJ}, 1")
        a(f"s_lshl_b32 s{sTMP2}, s{sKVH}, 1")
        a(f"s_add_u32 s{sTMP}, s{sTMP}, s{sTMP2}")
        a(f"s_lshl_b32 s{sTMP}, s{sTMP}, 3")
        a(f"s_lshr_b32 s{sTMP2}, s{sJ}, 1")
        a(f"s_add_u32 s{sTMP}, s{sTMP}, s{sTMP2}")
        a(f"s_mul_i32 s{sTMP}, s{sTMP}, {OP_STRIDE}")
        a(f"s_add_u32 s{sTMP}, s{sTMP}, {WS_OP}")
        off, off2, MM = ml + 10, ml + 11, 100
        d_off512(off, off2)
        a(f"v_and_b32 v{off2}, 31, v{vL}")
        a(f"v_cmp_ne_u32 vcc, 0, v{off2}")
        a(f"v_lshlrev_b32 v{off2}, 4, v{ml+8}")
        a(f"v_mov_b32 v{ml+9}, {OOB}")
        a(f"v_cndmask_b32 v{off2}, v{off2}, v{ml+9}, vcc")
        a("s_waitcnt lgkmcnt(4)")
        a(f"v_max3_f32 v{MM}, v{ml}, v{ml+2}, v{ml+4}")
        a(f"v_max_f32 v{MM}, v{MM}, v{ml+6}")
        for k in range(4): a(f"v_sub_f32 v{ml+2*k}, v{ml+2*k}, v{MM}")
        for k in range(4): a(f"v_mul_f32 v{ml+2*k}, {f32(LOG2E)}, v{ml+2*k}")
        for k in range(4): a(f"v_exp_f32 v{ml+2*k}, v{ml+2*k}")
        a(f"v_mul_f32 v{MM+1}, v{ml}, v{ml+1}")
        for k in range(1, 4): a(f"v_fmac_f32 v{MM+1}, v{ml+2*k}, v{ml+2*k+1}")
        a(f"v_mov_b32 v{MM+2}, v{MM}")
        a(f"v_mov_b32 v{MM+3}, v{MM+1}")
        a("s_waitcnt lgkmcnt(0)")
        for r in range(4): a(f"v_mul_f32 v{T+r}, v{ml}, v{T+r}")
        for k in range(1, 4):
            for r in range(4): a(f"v_fmac_f32 v{T+r}, v{ml+2*k}, v{T+4*k+r}")
        tag(T); tag(MM)
        a.counting = False
        a(f"buffer_store_dwordx4 {q4(T)}, v{off}, {srd(SWS)}, s{sTMP} offen sc1")
        a(f"buffer_store_dwordx4 {q4(MM)}, v{off2}, {srd(SWS)}, s{sTMP} offen offset:1024 sc1")
        a.counting = True
        a.label(skip)

    OG = 96
    vOGo, vOGm = 94, 95
    sOG, sOGm = sKV0, sKV1
    def ogather_setup():
        a(f"s_lshr_b32 s{sTMP}, s{sG}, 2")
        a(f"s_mul_i32 s{sOG}, s{sTMP}, {16*OP_STRIDE}")
        a(f"s_add_u32 s{sOG}, s{sOG}, {WS_OP}")
        a(f"s_bfe_u32 s{sTMP}, s{sG}, 0x10001")
        a(f"s_lshl_b32 s{sTMP}, s{sTMP}, 4")
        a(f"s_add_u32 s{sOGm}, s{sOG}, s{sTMP}")
        a(f"s_and_b32 s{sTMP}, s{sG}, 3")
        a(f"s_lshl_b32 s{sTMP}, s{sTMP}, 8")
        a(f"s_add_u32 s{sOG}, s{sOG}, s{sTMP}")
        a(f"s_lshl_b32 s{sTMP}, s{sWV}, 6")
        a(f"s_add_u32 s{sOG}, s{sOG}, s{sTMP}")
        a(f"v_mul_u32_u24 v{vOGm}, {OP_STRIDE}, v{vI}")
        a(f"v_lshl_add_u32 v{vOGo}, v{vG}, 4, v{vOGm}")
    def ogather():
        a(f"buffer_load_dwordx4 {q4(OG)}, v{vOGo}, {srd(SWS)}, s{sOG} offen sc1", vid="OG0")
        a(f"buffer_load_dwordx4 {q4(OG+4)}, v{vOGm}, {srd(SWS)}, s{sOGm} offen offset:1024 sc1", vid="OG1")
    def ofinish():
        checked(ogather, [OG, OG + 4], T + 13, "o")
        m, l, M = OG + 4, OG + 5, OG + 6
        red8("v_max_f32", [M])
        a(f"v_sub_f32 v{m}, v{m}, v{M}")
        a(f"v_mul_f32 v{m}, {f32(LOG2E)}, v{m}")
        a(f"v_exp_f32 v{m}, v{m}")
        for r in (l, OG, OG + 1, OG + 2, OG + 3): a(f"v_mul_f32 v{r}, v{r}, v{m}")
        red8("v_add_f32", [l, OG, OG + 1, OG + 2, OG + 3])
        a(f"v_rcp_f32 v{l}, v{l}")
        for r in range(4): a(f"v_mul_f32 v{OG+r}, v{OG+r}, v{l}")
        for r in range(4): a(f"v_cvt_pk_bf16_f32 v{OG+r}, v{OG+r}, v{OG+r}")
    def wsoff(c3_s):
        a(f"s_lshl_b32 s{sWOFF}, s{sG}, 6")
        a(f"s_lshl_b32 s{sTMP}, s{sWV}, 4")
        a(f"s_add_u32 s{sWOFF}, s{sWOFF}, s{sTMP}")
        a(f"s_mul_i32 s{sWOFF}, s{sWOFF}, 1152")
        if c3_s is not None:
            a(f"s_mul_i32 s{sTMP}, s{c3_s}, 384")
            a(f"s_add_u32 s{sWOFF}, s{sWOFF}, s{sTMP}")
    def w3compute(units, rep, bcast):
        for t in range(4):
            q = aop(rep, f"quad_perm:[{t},{t},{t},{t}]") if bcast else aop(rep + t)
            for regs6, acc, ids in units:
                need(ids[t]); need(ids[4 + t // 2])
                mfma(acc, q, regs6[t], first=(t == 0))
                mfma(acc + 4 + 4 * (t & 1), q, regs6[4 + t // 2], first=(t < 2))
    def w3write(acc, part):
        for r in range(4): dpp("v_add_f32", acc + 4 + r, acc + 8 + r, acc + 4 + r, "row_ror:8")
        a(f"ds_write_b128 v{vXO}, {q4(acc)} offset:{LDS_R + 4096*part}")
        a(f"ds_write_b128 v{vXO}, {q4(acc+4)} offset:{LDS_R + 4096*(part+1)}")
    def reduce_part(lds_addr_v, voff, soff):
        for k in range(4): a(f"ds_read_b128 {q4(T+4*k)}, v{lds_addr_v} offset:{LDS_R + 1024*k}")
        a("s_waitcnt lgkmcnt(0)")
        sum4(T); tag(T)
        a(f"buffer_store_dwordx4 {q4(T)}, v{voff}, {srd(SWS)}, s{soff} offen sc1")

    def write_stamps():
        if not p.STAMPS: return
        a("s_waitcnt vmcnt(0)")
        stamp(11)
        a("s_waitcnt lgkmcnt(0)")
        a(f"s_lshl_b32 s{sTMP}, s2, 2")
        a(f"s_add_u32 s{sTMP}, s{sTMP}, s{sWV}")
        a(f"s_mul_i32 s{sTMP}, s{sTMP}, 96")
        a(f"s_add_u32 s{sTMP}, s{sTMP}, {STAMP_OFF}")
        a("v_mov_b32 v72, 0")
        a("s_mov_b64 exec, 1")
        for k in range(6):
            for r in range(4): a(f"v_mov_b32 v{76+4*k+r}, s{sST+4*k+r}")
        for k in range(6):
            a(f"buffer_store_dwordx4 {q4(76+4*k)}, v72, {srd(SWS)}, s{sTMP} offen offset:{16*k}")
        if p.DBG:
            a("s_load_dwordx2 s[4:5], s[0:1], 80")
            a("v_not_b32 v73, v76")
            a("s_waitcnt lgkmcnt(0)")
            a("global_atomic_umax v72, v73, s[4:5]")
            for k in range(12):
                a(f"global_atomic_umax v72, v{76+2*k}, s[4:5] offset:{4+4*k}")

    def path_F(with_w):
        a.restore(snap)
        win[0] = p.W_FW if with_w else p.W
        if p.STAMPS:
            for k in (9, 10): a(f"s_mov_b64 s[{sST+2*k}:{sST+2*k+1}], s[{sST}:{sST+1}]")
        for n in range(12): stream.append((f"G{n}", gload(n)))
        attention()
        DR = [RV + 4 * k for k in range(6)]
        WR = [RK + 4 * k for k in range(6)]
        for n in range(6): stream.append((f"D{n}", w3load(f"D{n}", n, DR[n], SDN, sDOFF)))
        vHP, vHG, sHP = T + 20, T + 21, sQOFF
        a(f"v_lshrrev_b32 v{T}, 1, v{vG}")
        a(f"v_lshlrev_b32 v{vHP}, 8, v{T}")
        a(f"v_lshl_add_u32 v{vHP}, v{vB}, 9, v{vHP}")
        a(f"v_lshl_add_u32 v{vHP}, v{vJ}, 5, v{vHP}")
        a(f"v_and_b32 v{T}, 1, v{vG}")
        a(f"v_lshl_add_u32 v{vHP}, v{T}, 4, v{vHP}")
        a(f"v_and_b32 v{T}, 3, v{vL}")
        a(f"v_lshlrev_b32 v{vHG}, 10, v{T}")
        a(f"v_bfe_u32 v{T}, v{vL}, 2, 1")
        a(f"v_lshl_add_u32 v{vHG}, v{T}, 9, v{vHG}")
        a(f"v_lshl_add_u32 v{vHG}, v{vB}, 8, v{vHG}")
        a(f"v_lshl_add_u32 v{vHG}, v{vG}, 4, v{vHG}")
        sH0, sH1, sH2 = 3, 4, 5
        a(f"s_mul_i32 s{sH0}, s{sF}, {3*4096}")
        a(f"s_add_u32 s{sH0}, s{sH0}, {WS_HP}")
        a(f"s_lshl_b32 s{sHP}, s{sR3}, 12")
        a(f"s_add_u32 s{sHP}, s{sHP}, s{sH0}")
        a(f"s_lshl_b32 s{sTMP}, s{sWV}, 10")
        a(f"s_add_u32 s{sHP}, s{sHP}, s{sTMP}")
        a(f"s_lshl_b32 s{sTMP}, s{sWV}, 6")
        a(f"s_add_u32 s{sH0}, s{sH0}, s{sTMP}")
        a(f"s_add_u32 s{sH1}, s{sH0}, 4096")
        a(f"s_add_u32 s{sH2}, s{sH0}, 8192")
        if with_w:
            a(f"s_lshl_b32 s{sG}, s{sX8}, 3")
            a(f"s_add_u32 s{sG}, s{sG}, s{sFB}")
            a(f"s_add_u32 s{sG}, s{sG}, 5")
            ogather_setup(); wsoff(sR3)
        sPUB, vPUB, vRA = 6, T + 18, T + 19
        a(f"s_mul_i32 s{sPUB}, s{sF}, 4608")
        a(f"s_add_u32 s{sPUB}, s{sPUB}, {WS_FP}")
        if with_w:
            a(f"s_mul_i32 s{sTMP}, s{sG}, 4608")
            a(f"s_add_u32 s{sTMP}, s{sTMP}, {WS_SP}")
            a(f"s_cmp_ge_u32 s{sWV}, 2")
            a(f"s_cselect_b32 s{sPUB}, s{sTMP}, s{sPUB}")
        a(f"s_mul_i32 s{sTMP}, s{sR3}, 768")
        a(f"s_add_u32 s{sPUB}, s{sPUB}, s{sTMP}")
        a(f"s_bitcmp1_b32 s{sWV}, 0")
        a(f"s_cselect_b64 vcc, -1, 0")
        a(f"v_cndmask_b32 v{vPUB}, v{vPF}, v{vPH}, vcc")
        a(f"s_lshl_b32 s{sTMP}, s{sWV}, 12")
        a(f"v_add_u32 v{vRA}, s{sTMP}, v{vL16}")
        sODD, sB1, sMAT = 96, 98, 100
        a(f"v_and_b32 v{T}, 1, v{vL}"); a(f"v_cmp_eq_u32 s[{sODD}:{sODD+1}], 1, v{T}")
        a(f"v_and_b32 v{T}, 2, v{vL}"); a(f"v_cmp_eq_u32 s[{sB1}:{sB1+1}], 2, v{T}")
        a(f"v_and_b32 v{T}, 4, v{vL}"); a(f"v_cmp_eq_u32 s[{sMAT}:{sMAT+1}], 4, v{T}")
        for n in range(12):
            q = aop(vXG + n)
            need(f"G{n}")
            mfma(accG, q, RG + 4 * n, first=(n == 0))
        tag(accG)
        stamp(6)
        a(f"buffer_store_dwordx4 {q4(accG)}, v{vHP}, {srd(SWS)}, s{sHP} offen sc1", vid="HS")
        while stream: issue()
        HG = T
        def hgather():
            for k, s in enumerate((sH0, sH1, sH2)):
                a(f"buffer_load_dwordx4 {q4(HG+4*k)}, v{vHG}, {srd(SWS)}, s{s} offen sc1", vid=f"HG{k}")
        if with_w:
            ogather()
            for n in range(6): stream.append((f"W{n}", w3load(f"W{n}", n, WR[n], SWO, sWOFF)))
            pump(2)
            hgather()
            while stream: pump()
            a.wait("OG1")
            ofinish()
        else:
            a.wait(p.HG_WAIT)
            hgather()
        a.wait("HG2")
        stamp(7)
        checked(hgather, [HG, HG + 4, HG + 8], HG + 12, "h")
        stamp(8)
        for k in (4, 8):
            a(f"v_pk_add_f32 v[{HG}:{HG+1}], v[{HG}:{HG+1}], v[{HG+k}:{HG+k+1}]")
            a(f"v_pk_add_f32 v[{HG+2}:{HG+3}], v[{HG+2}:{HG+3}], v[{HG+k+2}:{HG+k+3}]")
        k0, k1, s0, s1 = HG + 4, HG + 5, HG + 6, HG + 7
        a(f"v_cndmask_b32 v{s0}, v{HG+1}, v{HG}, s[{sODD}:{sODD+1}]")
        a(f"v_cndmask_b32 v{s1}, v{HG+3}, v{HG+2}, s[{sODD}:{sODD+1}]")
        a(f"v_cndmask_b32 v{k0}, v{HG}, v{HG+1}, s[{sODD}:{sODD+1}]")
        a(f"v_cndmask_b32 v{k1}, v{HG+2}, v{HG+3}, s[{sODD}:{sODD+1}]")
        dpp("v_add_f32", k0, s0, k0, "quad_perm:[1,0,3,2]")
        dpp("v_add_f32", k1, s1, k1, "quad_perm:[1,0,3,2]")
        a(f"v_cndmask_b32 v{s0}, v{k1}, v{k0}, s[{sB1}:{sB1+1}]")
        a(f"v_cndmask_b32 v{k0}, v{k0}, v{k1}, s[{sB1}:{sB1+1}]")
        dpp("v_add_f32", k0, s0, k0, "quad_perm:[2,3,0,1]")
        x, t, hh = HG, HG + 1, HG + 2
        bf16r(x, k0)
        c0 = -2.0 * math.sqrt(2.0 / math.pi) * LOG2E
        a(f"v_mul_f32 v{t}, v{x}, v{x}")
        a(f"v_mov_b32 v{hh}, {f32(c0)}")
        a(f"v_fmac_f32 v{hh}, {f32(c0 * 0.044715)}, v{t}")
        a(f"v_mul_f32 v{t}, v{hh}, v{x}")
        a(f"v_exp_f32 v{t}, v{t}")
        a(f"v_add_f32 v{t}, 1.0, v{t}")
        a(f"v_rcp_f32 v{t}, v{t}")
        a(f"v_mul_f32 v{t}, v{t}, v{x}")
        bf16r(t, t)
        a(f"v_cndmask_b32 v{t}, v{t}, v{x}, s[{sMAT}:{sMAT+1}]")
        a(f"v_mov_b32_dpp v{x}, v{t} row_shl:4 row_mask:0xf bank_mask:0x5")
        a(f"v_mov_b32_dpp v{x}, v{t} row_shr:4 row_mask:0xf bank_mask:0xa")
        a(f"v_mul_f32 v{hh}, v{t}, v{x}")
        a(f"v_cvt_pk_bf16_f32 v{hh}, v{hh}, v{hh}")
        w3compute([(DR, ACC3, [f"D{n}" for n in range(6)])], hh, True)
        if with_w:
            w3compute([(WR, RQ, [f"W{n}" for n in range(6)])], OG, False)
        w3write(ACC3, 0)
        if with_w: w3write(RQ, 2)
        a("s_waitcnt lgkmcnt(0)")
        a("s_barrier")
        done = a.newlabel("fdone")
        if not with_w:
            a(f"s_cmp_ge_u32 s{sWV}, 2")
            a.branch(f"s_cbranch_scc1 {done}")
        reduce_part(vRA, vPUB, sPUB)
        a.label(done)
        write_stamps()
        a("s_endpgm")

    def path_L():
        a.restore(snap)
        win[0] = p.W_L
        if p.STAMPS:
            for k in (6, 9, 10): a(f"s_mov_b64 s[{sST+2*k}:{sST+2*k+1}], s[{sST}:{sST+1}]")
        a(f"s_lshl_b32 s{sG}, s{sX8}, 3")
        a(f"s_add_u32 s{sG}, s{sG}, s{sU}")
        a(f"s_sub_u32 s{sG}, s{sG}, 27")
        wsoff(None)
        sW1, sW2 = 3, 4
        a(f"s_add_u32 s{sW1}, s{sWOFF}, 384")
        a(f"s_add_u32 s{sW2}, s{sWOFF}, 768")
        regs = [[RG + 4 * k for k in range(6)], [RG + 24 + 4 * k for k in range(6)], [RV + 4 * k for k in range(6)]]
        so = [sWOFF, sW1, sW2]
        for c in range(2):
            for n in range(6): stream.append((f"W{c}_{n}", w3load(f"W{c}_{n}", n, regs[c][n], SWO, so[c])))
        attention()
        for n in range(6): stream.append((f"W2_{n}", w3load(f"W2_{n}", n, regs[2][n], SWO, so[2])))
        ogather_setup()
        sRL, sRB, sRO = 5, 6, sDOFF
        a(f"s_mul_i32 s{sRL}, s{sX8}, 5")
        a(f"s_add_u32 s{sRL}, s{sRL}, s{sU}")
        a(f"s_sub_u32 s{sRL}, s{sRL}, 27")
        a(f"s_lshl_b32 s{sRO}, s{sRL}, 5")
        a(f"s_lshl_b32 s{sTMP}, s{sWV}, 3")
        a(f"s_add_u32 s{sRO}, s{sRO}, s{sTMP}")
        vRO, vRO2, vOO, vXX = vXG, vXG + 1, vXG + 2, vXG + 3
        a(f"v_lshrrev_b32 v{T}, 1, v{vL}")
        a(f"v_mul_u32_u24 v{vRO}, 4608, v{T}")
        a(f"v_and_b32 v{T}, 7, v{T}")
        a(f"v_mul_u32_u24 v{vRO2}, 4608, v{T}")
        a(f"v_and_b32 v{T}, 1, v{vL}")
        a(f"v_lshl_add_u32 v{vRO}, v{T}, 4, v{vRO}")
        a(f"v_lshl_add_u32 v{vRO2}, v{T}, 4, v{vRO2}")
        a(f"v_lshrrev_b32 v{T+1}, 1, v{vG}")
        a(f"v_and_b32 v{T+2}, 1, v{vG}")
        a(f"v_lshl_add_u32 v{T+1}, v{T+2}, 1, v{T+1}")
        a(f"v_lshl_add_u32 v{vOO}, v{T}, 2, v{T+1}")
        a(f"v_lshlrev_b32 v{vOO}, 1, v{vOO}")
        a(f"s_lshl_b32 s{sRB}, s{sRO}, 1")
        a(f"buffer_load_ushort v{vXX}, v{vOO}, {srd(SX)}, s{sRB} offen", vid="XX")
        a(f"v_cmp_lt_u32 vcc, 1, v{vI}")
        a(f"v_mov_b32 v{T}, {OOB}")
        a(f"v_cndmask_b32 v{vOO}, v{vOO}, v{T}, vcc")
        hooks["W2_2"] = ogather
        while stream: pump()
        a.wait("OG1")
        stamp(7)
        ofinish()
        stamp(8)
        accs = [ACC3, RQ, RK]
        w3compute([(regs[c], accs[c], [f"W{c}_{n}" for n in range(6)]) for c in range(3)], OG, False)
        for c in range(3): w3write(accs[c], 2 * c)
        sPUB, vPUB, vRA = sW1, T + 18, T + 19
        a(f"s_mul_i32 s{sPUB}, s{sG}, 4608")
        a(f"s_add_u32 s{sPUB}, s{sPUB}, {WS_SP}")
        a(f"s_lshr_b32 s{sTMP}, s{sWV}, 1")
        a(f"s_mul_i32 s{sTMP}, s{sTMP}, 768")
        a(f"s_add_u32 s{sW2}, s{sPUB}, 1536")
        a(f"s_add_u32 s{sPUB}, s{sPUB}, s{sTMP}")
        a(f"s_bitcmp1_b32 s{sWV}, 0")
        a(f"s_cselect_b64 vcc, -1, 0")
        a(f"v_cndmask_b32 v{vPUB}, v{vPF}, v{vPH}, vcc")
        a(f"s_lshl_b32 s{sTMP}, s{sWV}, 12")
        a(f"v_add_u32 v{vRA}, s{sTMP}, v{vL16}")
        a("s_waitcnt lgkmcnt(0)")
        a("s_barrier")
        reduce_part(vRA, vPUB, sPUB)
        skip = a.newlabel("lpub")
        a(f"s_cmp_ge_u32 s{sWV}, 2")
        a.branch(f"s_cbranch_scc1 {skip}")
        a(f"v_add_u32 v{vRA}, {4*4096}, v{vRA}")
        reduce_part(vRA, vPUB, sW2)
        a.label(skip)
        stamp(9)
        done = a.newlabel("ldone")
        a(f"s_cmp_ge_u32 s{sRL}, 36")
        a.branch(f"s_cbranch_scc1 {done}")
        sS0, sS1, sF0, sF1, sF2 = sKV0, sKV1, sW1, sW2, sQOFF
        a(f"s_lshl_b32 s{sTMP}, s{sRO}, 2")
        a(f"s_add_u32 s{sS0}, s{sTMP}, {WS_SP}")
        a(f"s_add_u32 s{sS1}, s{sTMP}, {WS_SP + 32*4608}")
        a(f"s_add_u32 s{sF0}, s{sTMP}, {WS_FP}")
        a(f"s_add_u32 s{sF1}, s{sTMP}, {WS_FP + 32*4608}")
        a(f"s_add_u32 s{sF2}, s{sTMP}, {WS_FP + 64*4608}")
        R = RG
        def rgather():
            for k, (s, v) in enumerate(((sS0, vRO), (sS1, vRO), (sF0, vRO), (sF1, vRO), (sF2, vRO2))):
                a(f"buffer_load_dwordx4 {q4(R+4*k)}, v{v}, {srd(SWS)}, s{s} offen sc1")
        rgather()
        a("s_waitcnt vmcnt(0)")
        checked(rgather, [R + 4 * k for k in range(5)], T, "r")
        stamp(10)
        Sx, Fx = R, R + 8
        for r in range(4): a(f"v_fmac_f32 v{Fx+r}, 0.25, v{R+16+r}".replace("0.25", f32(0.25)))
        for b in (Sx, Fx):
            a(f"v_pk_add_f32 v[{b}:{b+1}], v[{b}:{b+1}], v[{b+4}:{b+5}]")
            a(f"v_pk_add_f32 v[{b+2}:{b+3}], v[{b+2}:{b+3}], v[{b+6}:{b+7}]")
        for b in (Sx, Fx):
            a(f"v_permlane32_swap_b32 v{b}, v{b+1}")
            a(f"v_permlane32_swap_b32 v{b+2}, v{b+3}")
        for b in (Sx, Fx):
            a(f"v_add_f32 v{b}, v{b}, v{b+1}")
            a(f"v_add_f32 v{b+2}, v{b+2}, v{b+3}")
        for b in (Sx, Fx): a(f"v_permlane16_swap_b32 v{b}, v{b+2}")
        for b in (Sx, Fx): a(f"v_add_f32 v{b}, v{b}, v{b+2}")
        for ctl in ("quad_perm:[2,3,0,1]", "row_ror:4", "row_ror:8"):
            for b in (Fx, Sx): dpp("v_add_f32", b, b, b, ctl)
        bf16r(Fx, Fx)
        a(f"v_mul_f32 v{T}, {f32(-LOG2E)}, v{Fx}")
        a(f"v_exp_f32 v{T}, v{T}")
        bf16r(Sx, Sx)
        a(f"v_add_f32 v{T}, 1.0, v{T}")
        a(f"v_rcp_f32 v{T}, v{T}")
        a(f"v_lshlrev_b32 v{vXX}, 16, v{vXX}")
        a(f"v_mul_f32 v{T}, v{T}, v{Fx}")
        bf16r(T, T)
        a(f"v_mul_f32 v{T}, v{T}, v{Sx}")
        bf16r(T, T)
        a(f"v_add_f32 v{T}, v{T}, v{vXX}")
        a(f"v_cvt_pk_bf16_f32 v{T}, v{T}, v{T}")
        a(f"buffer_store_short v{T}, v{vOO}, {srd(SOUT)}, s{sRB} offen")
        a(f"s_cmp_lg_u32 s{sRO}, 0")
        a.branch(f"s_cbranch_scc1 {done}")
        a(f"s_lshl_b32 s{sTMP}, s{sT0+1}, 8")
        a(f"s_or_b32 s{sT}, s{sT0}, s{sTMP}")
        a(f"s_lshl_b32 s{sTMP}, s{sT0+2}, 16")
        a(f"s_or_b32 s{sT}, s{sT}, s{sTMP}")
        a(f"s_lshl_b32 s{sTMP}, s{sT0+3}, 24")
        a(f"s_or_b32 s{sT}, s{sT}, s{sTMP}")
        a(f"v_mov_b32 v{T+1}, s{sT}")
        a(f"v_mov_b32 v{T+2}, {WS_E}")
        a(f"buffer_store_dword v{T+1}, v{T+2}, {srd(SWS)}, 0 offen sc1")
        a.label(done)
        write_stamps()
        a("s_endpgm")

    path_F(False)
    a.raw("L_path_FW:")
    path_F(True)
    a.raw("L_path_L:")
    path_L()
    a.raw("L_end:")
    a("s_endpgm")
    a.raw("L_code_end:")
    a.raw('.section .rodata,"a"'); a.raw(".p2align 6"); a.raw(f".amdhsa_kernel {NAME}")
    a.raw(f"  .amdhsa_next_free_vgpr {NV}"); a.raw("  .amdhsa_next_free_sgpr 102"); a.raw(f"  .amdhsa_accum_offset {NV}")
    a.raw("  .amdhsa_group_segment_fixed_size 0"); a.raw("  .amdhsa_kernarg_size 96"); a.raw("  .amdhsa_user_sgpr_count 2")
    a.raw("  .amdhsa_user_sgpr_kernarg_segment_ptr 1"); a.raw("  .amdhsa_system_sgpr_workgroup_id_x 1"); a.raw(".end_amdhsa_kernel")
    return a.text()

if __name__ == "__main__":
    out = sys.argv[1]
    p = P()
    for kv in sys.argv[2:]:
        k, v = kv.split("=")
        cur = getattr(p, k)
        setattr(p, k, (v == "1") if isinstance(cur, bool) else type(cur)(v))
    open(out, "w").write(gen(p))
```
